```python
import torch

def _softmax(x, axis=-1):
    return torch.softmax(x, dim=axis)
def _gelu(x):
    return torch.nn.functional.gelu(x, approximate="tanh")
def _silu(x):
    return torch.nn.functional.silu(x)
def _sigmoid(x):
    return torch.sigmoid(x)
def _layernorm(x, axis=-1, eps=1e-5):
    m = x.mean(dim=axis, keepdim=True)
    v = x.var(dim=axis, keepdim=True, unbiased=False)
    return (x - m) / torch.sqrt(v + eps)
def _scatter_add(tgt, idx, src, axis=0):
    return tgt.clone().index_add_(axis, idx, src)
def _segment_sum(src, seg, n):
    out = torch.zeros((n,) + src.shape[1:], dtype=src.dtype)
    return out.index_add_(0, seg, src)
def _pad(x, pw):
    flat = tuple(v for pair in reversed(pw) for v in pair)
    return torch.nn.functional.pad(x, flat)

kernel_name = 'gated_mix__linear_kernel_hedgehog__softmax_full_mha__prompt'

def setup_inputs():

    _w = (lambda a: (lambda t: t.to(torch.bfloat16) if t.is_floating_point() else t)(torch.as_tensor(a)))
    def _A_setup():
        B, S, D, H = 1, 2048, 1024, 32
        Dh = D // H
        return {
            "x": _w((lambda *s: torch.randn(*s, dtype=torch.bfloat16) * 0.05)(B, S, D)),
            "wqkv": _w((lambda *s: torch.randn(*s, dtype=torch.bfloat16) * 3.2)(D, 3 * D)),
            "w_phi": _w((lambda *s: torch.randn(*s, dtype=torch.bfloat16) * 3.2)(H, Dh, Dh) * (Dh ** -0.5)),
            "wo": _w((lambda *s: torch.randn(*s, dtype=torch.bfloat16) * 1.6)(D, D)),
        }
    _A_in = _A_setup()

    def _B_setup():
        B, S, D = 1, 2048, 1024
        return {
            "x": _w((lambda *s: torch.randn(*s, dtype=torch.bfloat16) * 0.05)(B, S, D)),
            "wqkv": _w((lambda *s: torch.randn(*s, dtype=torch.bfloat16) * 3.2)(D, 3 * D)),
            "wo": _w((lambda *s: torch.randn(*s, dtype=torch.bfloat16) * 0.1)(D, D)),
        }
    _B_in = _B_setup()

    return {
        "A_x": _A_in["x"],
        "A_wqkv": _A_in["wqkv"],
        "A_w_phi": _A_in["w_phi"],
        "A_wo": _A_in["wo"],
        "B_x": _B_in["x"],
        "B_wqkv": _B_in["wqkv"],
        "B_wo": _B_in["wo"],
        "gate_w": _w((lambda *s: torch.randn(*s, dtype=torch.bfloat16) * 0.4)(1024) * 16.0),
    }

def reference(A_x, A_wqkv, A_w_phi, A_wo, B_x, B_wqkv, B_wo, gate_w):
    def _A_ref(x, wqkv, w_phi, wo):
        B, S, D = x.shape
        H = 32; Dh = D // H
        qkv = (lambda x, *d: x.permute(*d))((x @ wqkv).reshape(B, S, 3, H, Dh), 2, 0, 3, 1, 4)
        q, k, v = qkv[0], qkv[1], qkv[2]
        pq = torch.einsum("bhsd,hdf->bhsf", q, w_phi)
        pk = torch.einsum("bhsd,hdf->bhsf", k, w_phi)
        phi_q = torch.concatenate([_softmax(pq, axis=-1), _softmax(-pq, axis=-1)], axis=-1)
        phi_k = torch.concatenate([_softmax(pk, axis=-1), _softmax(-pk, axis=-1)], axis=-1)
        kv = torch.einsum("bhsf,bhsd->bhfd", phi_k, v)
        z  = torch.einsum("bhsf->bhf", phi_k)
        num = torch.einsum("bhqf,bhfd->bhqd", phi_q, kv)
        den = torch.einsum("bhqf,bhf->bhq", phi_q, z)[..., None] + 1e-6
        o = num / den
        return (lambda x, *d: x.permute(*d))(o, 0, 2, 1, 3).reshape(B, S, D) @ wo

    def _B_ref(x, wqkv, wo):
        B, S, D = x.shape
        H = 32; Dh = D // H
        qkv = (lambda x, *d: x.permute(*d))((x @ wqkv).reshape(B, S, 3, H, Dh), 2, 0, 3, 1, 4)
        q, k, v = qkv[0], qkv[1], qkv[2]
        scale = Dh ** -0.5
        scores = torch.einsum("bhqd,bhkd->bhqk", q, k) * scale
        p = _softmax(scores, axis=-1)
        o = torch.einsum("bhqk,bhkd->bhqd", p, v)
        return (lambda x, *d: x.permute(*d))(o, 0, 2, 1, 3).reshape(B, S, D) @ wo

    x = A_x
    g = _sigmoid((x * gate_w).sum(-1, keepdims=True))
    a = _A_ref(x, A_wqkv, A_w_phi, A_wo)
    b = _B_ref(x, B_wqkv, B_wo)
    return g * a + (1 - g) * b
```

```python
KN = 'gated_mix__linear_kernel_hedgehog__softmax_full_mha__prompt'
WS_KVB = 0
WS_QB  = 8 << 20
WS_QA  = 12 << 20
WS_KVP = 16 << 20
WS_ZP  = 18 << 20
WS_G   = (18 << 20) + (512 << 10)
WS_O   = 20 << 20
WS_SIZE = 28 << 20
LOG2E = 1.4426950408889634
import struct
def f2u(x): return struct.unpack('<I', struct.pack('<f', x))[0]
def fhex(x): return hex(f2u(x))

class Asm:
    def __init__(self):
        self.lines = []; self.nlabel = 0
    def __call__(self, s=''):
        for l in s.split('\n'): self.lines.append(l)
    def label(self, base='L'):
        self.nlabel += 1
        return f'{base}_{self.nlabel}'
    def text(self): return '\n'.join(self.lines) + '\n'

def vr(b, n=4): return f'v[{b}:{b+n-1}]' if n > 1 else f'v{b}'
def sr(b, n=4): return f's[{b}:{b+n-1}]' if n > 1 else f's{b}'

def kernel_begin(a, name):
    a(f'.globl {name}'); a('.p2align 8'); a(f'.type {name},@function'); a(f'{name}:')

def kernel_desc(name, vgpr, sgpr=102):
    accum = (vgpr + 3) // 4 * 4
    return f""".p2align 6
.amdhsa_kernel {name}
  .amdhsa_next_free_vgpr {vgpr}
  .amdhsa_next_free_sgpr {sgpr}
  .amdhsa_accum_offset {accum}
  .amdhsa_group_segment_fixed_size 0
  .amdhsa_kernarg_size 88
  .amdhsa_user_sgpr_count 2
  .amdhsa_user_sgpr_kernarg_segment_ptr 1
  .amdhsa_system_sgpr_workgroup_id_x 1
  .amdhsa_float_denorm_mode_32 3
.end_amdhsa_kernel
"""
def srd(a, s, lo, hi, size):
    a(f's_mov_b32 s{s}, s{lo}'); a(f's_mov_b32 s{s+1}, s{hi}')
    a(f's_mov_b32 s{s+2}, {size}'); a(f's_mov_b32 s{s+3}, 0x20000')

def interleave(main, extra, start=0, every=1):
    out = []; e = list(extra); k = 0
    for i, m in enumerate(main):
        out.append(m)
        if i >= start and (i - start) % every == 0 and k < len(e):
            x = e[k]; k += 1
            out += x if isinstance(x, list) else [x]
    while k < len(e):
        x = e[k]; k += 1
        out += x if isinstance(x, list) else [x]
    return out

STAMP = False
WS_STAMP = 32 << 20
def ws_size(): return (64 << 20) if STAMP else WS_SIZE
def stamp(a, k):
    if not STAMP: return
    a(f's_memrealtime s[{70+4*k}:{71+4*k}]'); a(f's_memtime s[{72+4*k}:{73+4*k}]'); a('s_waitcnt lgkmcnt(0)')
def stamp_flush(a, n, kidx, wssrd, swave, vtmp):
    if not STAMP: return
    a(f's_lshl_b32 s3, s2, 3'); a(f's_add_u32 s3, s3, s{swave}'); a('s_lshl_b32 s3, s3, 6'); a(f's_add_u32 s3, s3, {WS_STAMP + kidx*131072}')
    a(f'v_mbcnt_lo_u32_b32 v{vtmp}, -1, 0'); a(f'v_mbcnt_hi_u32_b32 v{vtmp}, -1, v{vtmp}')
    a(f'v_cmp_eq_u32 vcc, 0, v{vtmp}'); a(f'v_mov_b32 v{vtmp}, 0x7ffff000'); a(f'v_mov_b32 v{vtmp+1}, 0'); a('s_nop 0')
    a(f'v_cndmask_b32 v{vtmp}, v{vtmp}, v{vtmp+1}, vcc')
    for k in range(n):
        a(f'v_mov_b32 v{vtmp+2}, s{70+4*k}'); a(f'v_mov_b32 v{vtmp+3}, s{72+4*k}')
        a(f'buffer_store_dwordx2 v[{vtmp+2}:{vtmp+3}], v{vtmp}, s[{wssrd}:{wssrd+3}], s3 offen offset:{k*8}')
        a('s_nop 1')
    a('s_waitcnt vmcnt(0)')
```

```python
import re, sys
REG = re.compile(r'\b([vsa])\[(\d+):(\d+)\]|\b([vsa])(\d+)\b|\b(vcc|exec|m0|scc)\b')
def regs_of(tok):
    out = set()
    for m in REG.finditer(tok):
        if m.group(1):
            for i in range(int(m.group(2)), int(m.group(3)) + 1): out.add(m.group(1) + str(i))
        elif m.group(4): out.add(m.group(4) + m.group(5))
        else: out.add(m.group(6))
    return out
TRANS = ('v_exp_', 'v_log_', 'v_rcp_', 'v_rsq_', 'v_sqrt_', 'v_sin_', 'v_cos_')
class I:
    def __init__(s, text, ln):
        s.text = text; s.ln = ln
        t = text.split(None, 1)
        s.op = t[0]
        rest = t[1] if len(t) > 1 else ''
        ops = [x.strip() for x in re.split(r',(?![^\[]*\])', rest)] if rest else []
        s.ops = ops
        op = s.op
        s.mfma = op.startswith('v_mfma')
        s.valu = op.startswith('v_') and not s.mfma
        s.trans = op.startswith(TRANS)
        s.salu = op.startswith('s_')
        s.ds = op.startswith('ds_')
        s.vmem = op.startswith(('buffer_', 'global_', 'flat_'))
        s.lds_dma = s.vmem and (' lds' in text or 'load_lds' in op)
        s.w = set(); s.r = set()
        s.dpp = 'row_' in text or 'quad_perm' in text or 'wave_' in text or '_dpp' in op
        s.passes = 0
        s.A = s.B = s.C = set()
        if s.mfma:
            s.w = regs_of(ops[0]); s.A = regs_of(ops[1]); s.B = regs_of(ops[2]); s.C = regs_of(ops[3])
            s.r = s.A | s.B | s.C
            s.passes = 8 if '32x32x16' in op else 4 if '16x16x32' in op else 16
        elif s.valu:
            if op.startswith('v_permlane') and 'swap' in op:
                s.w = regs_of(ops[0]) | regs_of(ops[1]); s.r = set(s.w)
            elif op.startswith('v_cmpx'):
                s.w = regs_of(ops[0]) | {'exec'}; s.r = set().union(*[regs_of(o) for o in ops[1:]])
            elif op.startswith(('v_add_co', 'v_sub_co', 'v_addc_co', 'v_subb_co', 'v_subrev_co')):
                s.w = regs_of(ops[0]) | regs_of(ops[1]); s.r = set().union(*[regs_of(o) for o in ops[2:]])
            elif op.startswith('v_nop'):
                pass
            else:
                s.w = regs_of(ops[0]); s.r = set().union(set(), *[regs_of(o) for o in ops[1:]])
                if op.startswith(('v_fmac', 'v_dot2c', 'v_pk_fmac', 'v_writelane', 'v_mac')) or s.dpp: s.r |= s.w
                if op.startswith('v_cndmask') and len(ops) == 3: s.r.add('vcc')
        elif s.ds:
            if op.startswith(('ds_read', 'ds_bpermute', 'ds_permute', 'ds_swizzle')):
                s.w = regs_of(ops[0]); s.r = set().union(set(), *[regs_of(o) for o in ops[1:]])
            else:
                s.r = set().union(set(), *[regs_of(o) for o in ops])
        elif s.vmem:
            if 'load' in op and not s.lds_dma or ('atomic' in op and ' sc0' in text):
                s.w = regs_of(ops[0]); s.r = set().union(set(), *[regs_of(o) for o in ops[1:]])
                if 'atomic' in op: s.r |= s.w
            else:
                s.r = set().union(set(), *[regs_of(o) for o in ops])
            if s.lds_dma: s.r.add('m0')
        elif s.salu:
            if op.startswith(('s_cmp', 's_waitcnt', 's_nop', 's_barrier', 's_branch', 's_cbranch', 's_endpgm', 's_setprio', 's_sleep', 's_bitcmp')):
                s.r = set().union(set(), *[regs_of(o) for o in ops])
            else:
                s.w = regs_of(ops[0]) if ops else set(); s.r = set().union(set(), *[regs_of(o) for o in ops[1:]])
                if 'saveexec' in op: s.w.add('exec')
        s.ws = 1
        if op == 's_nop': s.ws = int(ops[0], 0) + 1
        s.wide_store = s.vmem and 'store' in op and ('x4' in op or 'x3' in op)
        if s.wide_store:
            s.data = regs_of(ops[0]) if op.startswith('buffer_') else regs_of(ops[1])
def isv(r): return r[0] in 'va' and r not in ('vcc',)
def need(p, c):
    n = 0; why = ''
    def upd(k, w):
        nonlocal n, why
        if k > n: n, why = k, w
    pv = {r for r in p.w if isv(r)}
    ps = {r for r in p.w if not isv(r)}
    if p.valu:
        if c.mfma and pv & c.r: upd(2, 'VALU->MFMA operand')
        if c.op.startswith('v_permlane') and pv & c.r: upd(2, 'VALU->permlane')
        if c.dpp and c.valu and pv & c.r: upd(2, 'VALU->DPP')
        if c.op.startswith(('v_readlane', 'v_readfirstlane')) and pv & c.r: upd(1, 'VALU->readlane')
        if p.trans and c.valu and not c.trans and pv & c.r: upd(1, 'trans->VALU')
        if p.trans and c.valu and c.trans and pv & c.r: upd(1, 'trans->trans (conservative)')
        if ps:
            sp = ps - {'exec'}
            if c.vmem and sp & c.r: upd(5, 'VALU sgpr->VMEM')
            if c.valu and sp & c.r: upd(2, 'VALU sgpr->VALU const')
            if c.op.startswith(('v_readlane', 'v_writelane')) and sp & c.r: upd(4, 'VALU sgpr->lane select')
            if c.salu and sp & c.r and not c.op.startswith('s_waitcnt'): upd(1, 'VALU sgpr->SALU (conservative)')
            if 'exec' in ps:
                if c.mfma: upd(4, 'VALU exec->MFMA')
                if c.dpp: upd(5, 'VALU exec->DPP')
                if c.op.startswith(('v_permlane', 'v_readlane', 'v_readfirstlane', 'v_writelane')): upd(4, 'cmpx->permlane/readlane')
        if 'op_sel' in p.text and c.valu and pv & c.r and not p.op.startswith('v_pk_'): upd(1, 'opsel->VALU')
    if p.mfma:
        ps_ = p.passes
        t_valu = {2: 5, 4: 8, 8: 12, 16: 20}[ps_]
        t_part = {2: 4, 4: 6, 8: 10, 16: 18}[ps_]
        if c.mfma:
            if pv & (c.A | c.B): upd(t_valu, 'MFMA D->MFMA A/B')
            if pv & c.C:
                if not (c.C == p.w and c.passes == p.passes): upd(t_part, 'MFMA D->MFMA C partial/other shape')
            if pv & c.w and not (pv & c.C):
                upd(t_part, 'MFMA D->MFMA D WAW (conservative)')
        elif (c.valu or c.vmem or c.ds) and pv & (c.r | c.w): upd(t_valu, 'MFMA D->VALU/mem')
        if c.valu and (p.C & c.w) and not (pv & c.w): upd({2: 1, 4: 3, 8: 7, 16: 15}[ps_], 'MFMA C WAR')
    if p.salu and 'm0' in p.w and (c.lds_dma or c.op.startswith('s_sendmsg')): upd(1, 'm0->DMA')
    if p.vmem and getattr(p, 'wide_store', False):
        if c.valu and p.data & c.w: upd(2, 'wide store WAR')
        elif (c.ds or c.vmem) and p.data & c.w: upd(1, 'wide store WAR (mem)')
    return n, why
def parse(text):
    ins = []; labels = {}
    for ln, l in enumerate(text.split('\n'), 1):
        l = l.split(';')[0].split('//')[0].strip()
        if not l or l.startswith('.'): continue
        m = re.match(r'^([A-Za-z_][\w.$]*):\s*(.*)$', l)
        if m:
            labels[m.group(1)] = len(ins)
            l = m.group(2).strip()
            if not l: continue
        ins.append(I(l, ln))
    return ins, labels
def check(text, maxws=21, verbose=True):
    ins, labels = parse(text)
    n = len(ins)
    def succ(i):
        x = ins[i]
        if x.op == 's_endpgm': return []
        if x.op == 's_branch': return [labels[x.ops[0]]]
        if x.op.startswith('s_cbranch'): return [labels[x.ops[0]], i + 1]
        return [i + 1] if i + 1 < n else []
    probs = []
    for i, p in enumerate(ins):
        if not (p.valu or p.mfma or (p.salu and 'm0' in p.w) or getattr(p, 'wide_store', False)): continue
        seen = {}
        st = [(j, 0) for j in succ(i)]
        while st:
            j, ws = st.pop()
            if ws >= maxws: continue
            if j in seen and seen[j] <= ws: continue
            seen[j] = ws
            c = ins[j]
            k, why = need(p, c)
            if k > ws: probs.append((p, c, k, ws, why))
            for s in succ(j): st.append((s, ws + c.ws))
    if verbose:
        for p, c, k, ws, why in probs[:60]:
            print(f'HAZARD {why}: need {k} have {ws}\n   L{p.ln}: {p.text}\n   L{c.ln}: {c.text}')
        print(f'{len(probs)} hazards')
    return probs
if __name__ == '__main__':
    check(open(sys.argv[1]).read())
```

```python
from common import *
import common

OPT = {}
XBUF = 0; XSZ = 32768; XRING = 3*XSZ
WBUF = XRING; WH = 12288; WRING = 5*WH
WPHI = WBUF + WRING
K1_LDS = WPHI + 4096

def accQ(db, tb): return 0 + (db*4 + tb)*4
def accK(db, tb): return 32 + (db*4 + tb)*4
def accV(tb, db): return 64 + (tb*2 + db)*4
def fX(st, tb): return 96 + st*40 + tb*4
def fW(st, seg, db): return 96 + st*40 + 16 + (seg*2 + db)*4
VXD = 176; VWD = 180; VXR = 181; VWR = 183; VLANE = 185; VST = 186; VSTK = 187
VXB = 214; VWB = 215

def ring(s, inc, size, t='s34'):
    return [f's_add_u32 s{s}, s{s}, {inc}', f's_sub_u32 {t}, s{s}, {size}', f's_min_u32 s{s}, s{s}, {t}']

def dma_w(k):
    return [[f's_add_u32 m0, s{31+k}, {WBUF}'], [f'buffer_load_dwordx4 v{VWD}, s[8:11], s{27+k} offen lds', f's_add_u32 s{27+k}, s{27+k}, 393216'],
            ring(31+k, 2*WH, WRING)]
def dma_x(i):
    r = [[f's_add_u32 m0, s30, {XBUF + i*1024}'], [f'buffer_load_dwordx4 v{VXD+i}, s[4:7], s26 offen lds']]
    if i == 3: r.append(['s_add_u32 s26, s26, 128'] + ring(30, XSZ, XRING))
    return r

def read_items(st, kh):
    it = []
    def rx(tb): return [f'ds_read_b128 {vr(fX(st,tb))}, v{VXR+kh} offset:{tb*2048}']
    def rw(seg, db, jj):
        r = fW(st, seg, db) + 2*jj
        return [f'ds_read_b64_tr_b16 {vr(r,2)}, v{VWR+db} offset:{seg*1024 + jj*512}']
    it += [rx(0), rw(0,0,0), rw(0,0,1), rx(1), rx(2), rx(3)]
    for seg, db in [(0,1),(1,0),(1,1),(2,0),(2,1)]:
        it += [rw(seg,db,0), rw(seg,db,1)]
    return it
def read_addr(kh):
    r = [f'v_add_u32 v{VWR}, s68, v{VWB}', f'v_xor_b32 v{VWR+1}, 128, v{VWR}'] + ring(68, WH, WRING, 's35')
    if kh == 0:
        r += [f'v_add_u32 v{VXR}, s69, v{VXB}', f'v_xor_b32 v{VXR+1}, 64, v{VXR}'] + ring(69, XSZ, XRING, 's35')
    return r

def mfmas(st):
    m = []
    for seg in range(3):
        for db in range(2):
            for tb in range(4):
                if seg < 2:
                    d = accQ(db,tb) if seg == 0 else accK(db,tb)
                    m.append(f'v_mfma_f32_16x16x32_bf16 {vr(d)}, {vr(fW(st,seg,db))}, {vr(fX(st,tb))}, {vr(d)}')
                else:
                    d = accV(tb,db)
                    m.append(f'v_mfma_f32_16x16x32_bf16 {vr(d)}, {vr(fX(st,tb))}, {vr(fW(st,seg,db))}, {vr(d)}')
    return m

def place(m, items):
    out = []
    by = {}
    for sl, l in items: by.setdefault(sl, []).append(l)
    for i, x in enumerate(m):
        out.append(x)
        for l in by.get(i, []): out += l
    return out

def step(a, cur, reads=True, extra=(), mf=True):
    nxt = cur ^ 1; kh = 0 if cur == 1 else 1
    m = mfmas(cur) if mf else []
    it = []
    if reads and not OPT.get('noreads'):
        for x in read_addr(kh): a(x)
        rd = read_items(nxt, kh)
        for i, r in enumerate(rd): it.append((i + OPT.get('rd0', 0), r))
    it += list(extra)
    if mf:
        for x in place(m, it): a(x)
    else:
        for sl, l in sorted(it, key=lambda t: t[0]):
            for x in l: a(x)
            if 'm0' in l[0]: a('s_nop 0')

def stage_dma(level):
    if OPT.get('nodma'): level = 0
    A = []; B = []
    if level >= 1:
        w0 = dma_w(0); A += [(0, w0[0]), (1, w0[1]), (2, w0[2])]
    if level == 2:
        w1 = dma_w(1); w2 = dma_w(2)
        A += [(2, w1[0]), (3, w1[1]), (4, w1[2]), (5, w2[0]), (6, w2[1]), (7, w2[2])]
        xs = OPT.get('xslots', [(0, 12), (0, 18), (1, 4), (1, 12)])
        for i in range(4):
            d = dma_x(i); stp, sl = xs[i]
            tgt = A if stp == 0 else B
            tgt += [(sl, d[0]), (sl + 1, d[1])]
            if i == 3: tgt += [(sl + 2, d[2])]
    return A, B

def stage(a, level, vm, first=False):
    a(f's_waitcnt vmcnt({vm}) lgkmcnt(0)')
    if first or not OPT.get('nobar'): a('s_barrier')
    if first: stamp(a, 1)
    A, B = stage_dma(level)
    if level == 1:
        w1 = dma_w(1)
        step(a, 1, extra=A)
        lab = a.label('K1_sk')
        a('s_cmp_ge_u32 s20, 4'); a(f's_cbranch_scc1 {lab}')
        for x in w1[0]: a(x)
        a('s_nop 0')
        for x in w1[1]: a(x)
        a(f'{lab}:')
    else:
        step(a, 1, extra=A, mf=not first)
    a('s_waitcnt lgkmcnt(0)')
    step(a, 0, extra=B)

def gen_k1(a, name):
    kernel_begin(a, name)
    a('s_cmp_ge_u32 s2, 256'); a('s_cbranch_scc1 K1_end')
    stamp(a, 0)
    a('s_load_dwordx4 s[36:39], s[0:1], 0')
    a('s_load_dwordx2 s[40:41], s[0:1], 16')
    a('s_load_dwordx2 s[46:47], s[0:1], 40')
    a('s_load_dwordx2 s[48:49], s[0:1], 56')
    a('s_load_dwordx2 s[50:51], s[0:1], 80')
    a('s_and_b32 s3, s2, 7'); a('s_lshr_b32 s91, s2, 3')
    a('s_lshr_b32 s23, s3, 2')
    a('s_and_b32 s22, s3, 3'); a('s_lshl_b32 s22, s22, 2'); a('s_and_b32 s34, s91, 3'); a('s_add_u32 s22, s22, s34')
    a('s_lshr_b32 s21, s91, 2')
    a('v_lshrrev_b32 v1, 6, v0')
    a(f'v_and_b32 v{VLANE}, 63, v0')
    a('v_readfirstlane_b32 s20, v1')
    L = VLANE
    a(f'v_lshrrev_b32 v2, 3, v{L}'); a(f'v_and_b32 v3, 7, v{L}'); a(f'v_lshrrev_b32 v4, 4, v{L}'); a(f'v_and_b32 v5, 15, v{L}')
    a('s_and_b32 s24, s20, 3'); a('s_lshr_b32 s25, s20, 2')
    a('v_xor_b32 v6, v3, v4'); a('v_lshlrev_b32 v6, 4, v6'); a(f'v_lshl_add_u32 v{VXD}, v2, 11, v6')
    a(f'v_xor_b32 v6, 64, v6'); a(f'v_lshl_add_u32 v6, v2, 11, v6')
    a(f'v_add_u32 v{VXD+1}, 16384, v6'); a(f'v_add_u32 v{VXD+2}, 32768, v{VXD}'); a(f'v_add_u32 v{VXD+3}, 49152, v6')
    a(f'v_lshrrev_b32 v6, 5, v{L}'); a('v_lshlrev_b32 v6, 2, v6'); a(f'v_bfe_u32 v7, v{L}, 1, 2'); a('v_add_u32 v6, v6, v7')
    a('v_mul_u32_u24 v6, 6144, v6')
    a('s_and_b32 s34, s20, 1')
    a('v_and_b32 v7, 3, v2'); a('v_xor_b32 v7, s34, v7'); a('v_lshlrev_b32 v7, 5, v7')
    a(f'v_and_b32 v8, 1, v{L}'); a('v_lshlrev_b32 v8, 4, v8')
    a(f'v_add3_u32 v{VWD}, v6, v7, v8')
    a('v_lshrrev_b32 v6, 1, v5'); a('v_xor_b32 v6, v6, v4'); a('v_lshlrev_b32 v6, 4, v6')
    a('v_lshl_add_u32 v6, v5, 7, v6'); a('s_lshl_b32 s34, s24, 13'); a(f'v_add_u32 v{VXB}, s34, v6')
    a('v_mul_u32_u24 v6, 3072, v4'); a('v_and_b32 v7, 1, v4'); a('s_lshl_b32 s34, s25, 1'); a('v_xor_b32 v7, s34, v7')
    a('v_lshl_add_u32 v6, v7, 7, v6'); a(f'v_bfe_u32 v7, v{L}, 2, 2'); a('v_lshl_add_u32 v6, v7, 5, v6')
    a(f'v_and_b32 v7, 3, v{L}'); a('v_lshl_add_u32 v6, v7, 3, v6'); a(f'v_add_u32 v{VWB}, {WBUF}, v6')
    a('v_lshrrev_b32 v6, 1, v4'); a('v_lshlrev_b32 v6, 10, v6'); a('v_and_b32 v7, 1, v4'); a('v_lshl_add_u32 v6, v7, 9, v6')
    a(f'v_lshl_add_u32 v{VST}, v5, 4, v6')
    a('v_lshrrev_b32 v7, 3, v5'); a('v_lshl_add_u32 v6, v7, 8, v6'); a('v_and_b32 v7, 7, v5'); a(f'v_lshl_add_u32 v{VSTK}, v7, 4, v6')
    a('s_lshl_b32 s26, s21, 8'); a('s_lshl_b32 s34, s20, 5'); a('s_add_u32 s26, s26, s34'); a('s_lshl_b32 s26, s26, 11')
    a('s_lshl_b32 s30, s20, 12')
    a(f's_mul_i32 s35, s24, {8*6144}'); a('s_lshl_b32 s34, s22, 7'); a('s_add_u32 s35, s35, s34')
    a('s_lshl_b32 s34, s25, 12')
    a('s_add_u32 s27, s35, s34'); a(f's_add_u32 s29, s27, {2*196608}'); a(f's_add_u32 s27, s27, {196608}')
    a(f's_mul_i32 s34, s25, {196608}'); a('s_add_u32 s28, s35, s34'); a(f's_add_u32 s28, s28, {196608 + 2048}')
    a('s_mul_i32 s35, s24, 3072'); a('s_lshl_b32 s34, s25, 11')
    a('s_add_u32 s31, s35, s34'); a(f's_add_u32 s33, s31, {2*WH}'); a(f's_add_u32 s31, s31, {WH}')
    a(f's_mul_i32 s34, s25, {WH}'); a('s_add_u32 s32, s35, s34'); a(f's_add_u32 s32, s32, {WH + 1024}')
    a('s_mov_b32 s68, 0'); a('s_mov_b32 s69, 0')
    a('s_waitcnt lgkmcnt(0)')
    a('s_cmp_eq_u32 s23, 0')
    a('s_mov_b32 s4, s36'); a('s_mov_b32 s5, s37'); a('s_mov_b32 s6, 4194304'); a('s_mov_b32 s7, 0x20000')
    a('s_cselect_b32 s8, s38, s46'); a('s_cselect_b32 s9, s39, s47'); a('s_mov_b32 s10, 6291456'); a('s_mov_b32 s11, 0x20000')
    srd(a, 12, 50, 51, ws_size())
    a('s_sub_u32 s35, s27, 196608'); a(f's_add_u32 m0, s31, {WBUF - WH}'); a('s_nop 0')
    a(f'buffer_load_dwordx4 v{VWD}, s[8:11], s35 offen lds')
    a('s_cmp_ge_u32 s20, 4'); a('s_cbranch_scc1 K1_pro0')
    a('s_sub_u32 s35, s28, 196608'); a(f's_add_u32 m0, s32, {WBUF - WH}'); a('s_nop 0')
    a(f'buffer_load_dwordx4 v{VWD}, s[8:11], s35 offen lds')
    a('K1_pro0:')
    def dma_x_all():
        for i in range(4):
            d = dma_x(i)
            for x in d[0]: a(x)
            a('s_nop 0')
            for l in d[1:]:
                for x in l: a(x)
    dma_x_all()
    a('s_cmp_eq_u32 s23, 0'); a('s_cbranch_scc0 K1_proB')
    srd(a, 16, 40, 41, 65536)
    a('s_and_b32 s34, s20, 3'); a('s_lshl_b32 s34, s34, 10'); a(f's_add_u32 m0, s34, {WPHI}')
    a('s_lshl_b32 s35, s22, 12'); a('s_add_u32 s35, s35, s34'); a(f'v_lshlrev_b32 v6, 4, v{L}')
    a('buffer_load_dwordx4 v6, s[16:19], s35 offen lds')
    a('s_branch K1_proJ')
    a('K1_proB:')
    srd(a, 16, 36, 37, 4194304); srd(a, 52, 48, 49, 2048)
    a('s_and_b32 s34, s3, 3'); a('s_lshl_b32 s34, s34, 5'); a('s_add_u32 s34, s34, s91'); a('s_lshl_b32 s34, s34, 3'); a('s_add_u32 s34, s34, s20')
    a('s_lshl_b32 s56, s34, 1')
    a('s_lshl_b32 s35, s56, 11')
    a(f'v_lshlrev_b32 v6, 5, v{L}')
    a('buffer_load_dwordx4 v[188:191], v6, s[16:19], s35 offen'); a('buffer_load_dwordx4 v[192:195], v6, s[16:19], s35 offen offset:16')
    a('buffer_load_dwordx4 v[196:199], v6, s[16:19], s35 offen offset:2048'); a('buffer_load_dwordx4 v[200:203], v6, s[16:19], s35 offen offset:2064')
    a('buffer_load_dwordx4 v[204:207], v6, s[52:55], 0 offen'); a('buffer_load_dwordx4 v[208:211], v6, s[52:55], 0 offen offset:16')
    a('K1_proJ:')
    for k in range(3):
        d = dma_w(k)
        for x in d[0]: a(x)
        a('s_nop 0')
        for l in d[1:]:
            for x in l: a(x)
    dma_x_all()
    for r in range(96): a(f'v_mov_b32 v{r}, 0')
    stamp(a, 1) if OPT.get('st1early') else None
    stage(a, 2, 5, first=True)
    a('s_mov_b32 s90, 13')
    a('K1_loop:')
    stage(a, 2, 5)
    a('s_sub_u32 s90, s90, 1'); a('s_cmp_lg_u32 s90, 0'); a('s_cbranch_scc1 K1_loop')
    stage(a, 1, 5)
    stage(a, 0, 0)
    a('s_waitcnt lgkmcnt(0)')
    step(a, 1, reads=False)
    stamp(a, 2)
    a('s_lshl_b32 s57, s22, 1'); a('s_add_u32 s57, s57, s25')
    a('s_lshl_b32 s58, s21, 3'); a('s_lshl_b32 s34, s24, 1'); a('s_add_u32 s58, s58, s34')
    a('s_lshl_b32 s59, s57, 17'); a('s_lshl_b32 s34, s58, 11'); a('s_add_u32 s59, s59, s34')
    a('s_cmp_eq_u32 s23, 0'); a('s_cbranch_scc1 K1_epiA')
    epi_B(a)
    a('s_branch K1_fin')
    a('K1_epiA:')
    epi_A(a)
    a('K1_fin:')
    stamp(a, 3)
    a('s_waitcnt vmcnt(0)')
    stamp(a, 4)
    stamp_flush(a, 5, 0, 12, 20, 240)
    a('K1_end:')
    a('s_endpgm')

def pack_qk(acc, T):
    out = []
    for tb in range(4):
        for db in range(2):
            r = acc(db, tb)
            out.append(f'v_cvt_pk_bf16_f32 v{T+tb*4+db*2}, v{r}, v{r+1}')
            out.append(f'v_cvt_pk_bf16_f32 v{T+tb*4+db*2+1}, v{r+2}, v{r+3}')
    return out
def pack_v(T):
    out = []
    for b in range(2):
        for db in range(2):
            for tl in range(2):
                r = accV(2*b+tl, db)
                out.append(f'v_cvt_pk_bf16_f32 v{T+(b*2+db)*4+tl*2}, v{r}, v{r+1}')
                out.append(f'v_cvt_pk_bf16_f32 v{T+(b*2+db)*4+tl*2+1}, v{r+2}, v{r+3}')
    return out

def epi_B(a):
    c = 32**-0.5 * LOG2E
    a(f's_mov_b32 s60, {fhex(c)}'); a(f's_mov_b32 s61, {fhex(c)}')
    a(f's_add_u32 s62, s59, {WS_QB}')
    a('s_lshl_b32 s63, s57, 18'); a('s_lshl_b32 s34, s58, 12'); a('s_add_u32 s63, s63, s34')
    a(f's_add_u32 s63, s63, {WS_KVB}'); a('s_add_u32 s64, s63, 4096')
    a('s_nop 1')
    for x in pack_qk(accK, 112): a(x)
    for tb in range(4):
        a(f'buffer_store_dwordx4 {vr(112+tb*4)}, v{VSTK}, s[12:15], s{63+(tb>>1)} offen offset:{(tb&1)*128}')
    for r in range(0, 32, 2): a(f'v_pk_mul_f32 {vr(r,2)}, {vr(r,2)}, s[60:61]')
    for x in pack_qk(accQ, 96): a(x)
    for tb in range(4):
        a(f'buffer_store_dwordx4 {vr(96+tb*4)}, v{VST}, s[12:15], s62 offen offset:{(tb>>1)*2048+(tb&1)*256}')
    for x in pack_v(128): a(x)
    for b in range(2):
        for db in range(2):
            a(f'buffer_store_dwordx4 {vr(128+(b*2+db)*4)}, v{VST}, s[12:15], s{63+b} offen offset:{2048+db*256}')
    a('s_mov_b32 s34, 0xffff0000')
    a('v_mov_b32 v0, 0'); a('v_mov_b32 v1, 0')
    for i in range(8):
        a(f'v_lshlrev_b32 v2, 16, v{204+i}'); a(f'v_and_b32 v3, s34, v{204+i}')
        for t in range(2):
            x = 188 + 8*t + i
            a(f'v_lshlrev_b32 v4, 16, v{x}'); a(f'v_and_b32 v5, s34, v{x}')
            a(f'v_fmac_f32 v{t}, v2, v4'); a(f'v_fmac_f32 v{t}, v3, v5')
    for sh in ['row_shr:1', 'row_shr:2', 'row_shr:4', 'row_shr:8']:
        a('s_nop 1')
        for t in range(2): a(f'v_add_f32_dpp v{t}, v{t}, v{t} {sh} row_mask:0xf bank_mask:0xf bound_ctrl:0')
    a('s_nop 1')
    for t in range(2): a(f'v_add_f32_dpp v{t}, v{t}, v{t} row_bcast:15 row_mask:0xa bank_mask:0xf')
    a('s_nop 1')
    for t in range(2): a(f'v_add_f32_dpp v{t}, v{t}, v{t} row_bcast:31 row_mask:0xc bank_mask:0xf')
    a(f's_mov_b32 s34, {fhex(-LOG2E)}')
    for t in range(2): a(f'v_mul_f32 v{t}, s34, v{t}')
    for t in range(2): a(f'v_exp_f32 v{t}, v{t}')
    a('s_nop 0')
    for t in range(2): a(f'v_add_f32 v{t}, 1.0, v{t}')
    for t in range(2): a(f'v_rcp_f32 v{t}, v{t}')
    a(f'v_cmp_eq_u32 vcc, 63, v{VLANE}')
    a('v_mov_b32 v2, 0x7ffff000'); a('s_lshl_b32 s34, s56, 2'); a(f's_add_u32 s34, s34, {WS_G}')
    a('v_cndmask_b32 v2, v2, 0, vcc') if False else None
    a('v_mov_b32 v3, 0')
    a('v_cndmask_b32 v2, v2, v3, vcc')
    a('buffer_store_dwordx2 v[0:1], v2, s[12:15], s34 offen')

def epi_A(a):
    QP, KP, VP = 96, 112, 128
    WF = 144; ONES = 152; ID = 156
    L = VLANE
    a(f'v_lshrrev_b32 v162, 4, v{L}'); a(f'v_bfe_u32 v163, v{L}, 2, 2'); a('v_lshl_add_u32 v163, v162, 2, v163')
    a(f'v_and_b32 v164, 3, v{L}'); a('v_lshlrev_b32 v164, 3, v164'); a('v_lshl_add_u32 v163, v163, 6, v164')
    a('s_lshl_b32 s34, s25, 11'); a(f's_add_u32 s34, s34, {WPHI}'); a('v_add_u32 v163, s34, v163')
    for fb in range(2):
        for jj in range(2):
            a(f'ds_read_b64_tr_b16 {vr(WF+fb*4+jj*2,2)}, v163 offset:{fb*32+jj*1024}')
    a(f's_add_u32 s62, s59, {WS_QA}')
    for x in pack_qk(accK, KP): a(x)
    for x in pack_qk(accQ, QP): a(x)
    for tb in range(4):
        a(f'buffer_store_dwordx4 {vr(QP+tb*4)}, v{VST}, s[12:15], s62 offen offset:{(tb>>1)*2048+(tb&1)*256}')
    for x in pack_v(VP): a(x)
    for r in range(4): a(f'v_mov_b32 v{ONES+r}, 0x3f803f80')
    a(f'v_and_b32 v164, 15, v{L}'); a('v_lshlrev_b32 v165, 2, v162'); a('v_sub_u32 v164, v164, v165')
    a('v_and_b32 v165, 1, v164'); a('v_lshlrev_b32 v165, 4, v165'); a('v_mov_b32 v166, 0x3f80'); a('v_lshlrev_b32 v165, v165, v166')
    a('v_lshrrev_b32 v164, 1, v164'); a('v_mov_b32 v166, 0')
    a('v_cmp_eq_u32 vcc, 0, v164'); a(f'v_mov_b32 v{ID}, 0'); a(f'v_mov_b32 v{ID+1}, 0')
    a(f'v_cndmask_b32 v{ID+2}, v166, v165, vcc')
    a('v_cmp_eq_u32 vcc, 1, v164'); a(f'v_mov_b32 v{ID+4}, 0'); a(f'v_mov_b32 v{ID+5}, 0')
    a(f'v_cndmask_b32 v{ID+3}, v166, v165, vcc')
    a('s_waitcnt lgkmcnt(0)')
    def P(tb, fb): return tb*8 + fb*4
    for tb in range(4):
        for fb in range(2):
            a(f'v_mfma_f32_16x16x32_bf16 {vr(P(tb,fb))}, {vr(WF+fb*4)}, {vr(KP+tb*4)}, 0')
    a(f's_mov_b32 s60, {fhex(LOG2E)}'); a(f's_mov_b32 s61, {fhex(LOG2E)}')
    a(f's_mov_b32 s66, {fhex(-LOG2E)}'); a(f's_mov_b32 s67, {fhex(-LOG2E)}')
    a('s_nop 3')
    MX = 162; NM = 166
    for k in range(4):
        for tb in range(4):
            p = tb*8
            if k == 0:
                a(f'v_max3_f32 v{MX+tb}, v{p}, v{p+1}, v{p+2}'); a(f'v_max3_f32 v{NM+tb}, -v{p}, -v{p+1}, -v{p+2}')
            elif k < 3:
                q = p + 1 + 2*k
                a(f'v_max3_f32 v{MX+tb}, v{MX+tb}, v{q}, v{q+1}'); a(f'v_max3_f32 v{NM+tb}, v{NM+tb}, -v{q}, -v{q+1}')
            else:
                a(f'v_max_f32 v{MX+tb}, v{MX+tb}, v{p+7}'); a(f'v_max_f32_e64 v{NM+tb}, v{NM+tb}, -v{p+7}')
    a('s_nop 1')
    for tb in range(4): a(f'v_permlane32_swap_b32 v{MX+tb}, v{NM+tb}')
    for tb in range(4): a(f'v_max_f32 v{MX+tb}, v{MX+tb}, v{NM+tb}')
    a('s_nop 0')
    a(f'v_permlane16_swap_b32 v{MX}, v{MX+1}'); a(f'v_permlane16_swap_b32 v{MX+2}, v{MX+3}')
    a(f'v_max_f32 v{MX}, v{MX}, v{MX+1}'); a(f'v_max_f32 v{MX+2}, v{MX+2}, v{MX+3}')
    M = lambda tb, sg: 220 + (tb*2 + sg)*2
    a(f'v_mov_b32 v{MX+1}, v{MX}'); a(f'v_mov_b32 v{MX+3}, v{MX+2}'); a('s_nop 0')
    a(f'v_permlane16_swap_b32 v{MX}, v{MX+1}'); a(f'v_permlane16_swap_b32 v{MX+2}, v{MX+3}')
    for tb in range(4): a(f'v_mov_b32 v{NM+tb}, v{MX+tb}')
    a('s_nop 0')
    for tb in range(4): a(f'v_permlane32_swap_b32 v{MX+tb}, v{NM+tb}')
    for tb in range(4):
        a(f'v_mul_f32 v{M(tb,0)}, s66, v{MX+tb}'); a(f'v_mul_f32 v{M(tb,1)}, s66, v{NM+tb}')
    E = lambda tb, sg: 32 + sg*32 + tb*8
    for sg in range(2):
        for tb in range(4):
            for i in range(0, 8, 2):
                cs = 's[60:61]' if sg == 0 else 's[66:67]'
                a(f'v_pk_fma_f32 {vr(E(tb,sg)+i,2)}, {vr(tb*8+i,2)}, {cs}, {vr(M(tb,sg),2)} op_sel_hi:[1,1,0]')
    for sg in range(2):
        for tb in range(4):
            for i in range(8): a(f'v_exp_f32 v{E(tb,sg)+i}, v{E(tb,sg)+i}')
    EP = lambda tb, sg: (sg*4 + tb)*4
    a('s_nop 0')
    for sg in range(2):
        for tb in range(4):
            for i in range(4): a(f'v_cvt_pk_bf16_f32 v{EP(tb,sg)+i}, v{E(tb,sg)+2*i}, v{E(tb,sg)+2*i+1}')
    SM = lambda tb, sg: 188 + (sg*4 + tb)*4
    a('s_nop 0')
    for sg in range(2):
        for tb in range(4):
            a(f'v_mfma_f32_16x16x32_bf16 {vr(SM(tb,sg))}, {vr(ONES)}, {vr(EP(tb,sg))}, 0')
    a('s_nop 0')
    RS = lambda tb, sg: 220 + (tb*2 + sg)*2
    for sg in range(2):
        for tb in range(4):
            if sg == 1 and tb == 3: a('s_nop 6')
            a(f'v_rcp_f32 v{RS(tb,sg)}, v{SM(tb,sg)}')
    a('s_nop 0')
    for sg in range(2):
        for tb in range(4):
            for i in range(0, 8, 2):
                a(f'v_pk_mul_f32 {vr(E(tb,sg)+i,2)}, {vr(E(tb,sg)+i,2)}, {vr(RS(tb,sg),2)} op_sel_hi:[1,0]')
    for sg in range(2):
        for tb in range(4):
            for i in range(4): a(f'v_cvt_pk_bf16_f32 v{EP(tb,sg)+i}, v{E(tb,sg)+2*i}, v{E(tb,sg)+2*i+1}')
    D = lambda tb, sg, fb: 32 + ((tb*2 + sg)*2 + fb)*4
    a('s_nop 0')
    for tb in range(4):
        for sg in range(2):
            for fb in range(2):
                idr = ID + 2 if fb == 0 else ID
                a(f'v_mfma_f32_16x16x32_bf16 {vr(D(tb,sg,fb))}, {vr(EP(tb,sg))}, {vr(idr)}, 0')
    PT = lambda b, sg, fb: ((b*2 + sg)*2 + fb)*4
    for b in range(2):
        if b == 1: a('s_nop 3')
        for sg in range(2):
            for fb in range(2):
                for tl in range(2):
                    d = D(2*b+tl, sg, fb)
                    a(f'v_cvt_pk_bf16_f32 v{PT(b,sg,fb)+2*tl}, v{d}, v{d+1}'); a(f'v_cvt_pk_bf16_f32 v{PT(b,sg,fb)+2*tl+1}, v{d+2}, v{d+3}')
    KV = lambda fbs, db: 188 + (fbs*2 + db)*4
    Z = lambda fbs: 220 + fbs*4
    a('s_nop 0')
    for b in range(2):
        for sg in range(2):
            for fb in range(2):
                fbs = sg*2 + fb
                for db in range(2):
                    d = KV(fbs, db)
                    a(f'v_mfma_f32_16x16x32_bf16 {vr(d)}, {vr(PT(b,sg,fb))}, {vr(VP+(b*2+db)*4)}, {"0" if b == 0 else vr(d)}')
                d = Z(fbs)
                a(f'v_mfma_f32_16x16x32_bf16 {vr(d)}, {vr(PT(b,sg,fb))}, {vr(ONES)}, {"0" if b == 0 else vr(d)}')
    a('s_barrier')
    a(f's_mul_i32 s34, s20, 12288'); a(f'v_lshlrev_b32 v0, 4, v{L}'); a('v_add_u32 v1, s34, v0')
    a('s_nop 4')
    for pi in range(8): a(f'ds_write_b128 v1, {vr(188+pi*4)} offset:{pi*1024}')
    for pi in range(4): a(f'ds_write_b128 v1, {vr(220+pi*4)} offset:{8192+pi*1024}')
    a('s_mul_i32 s34, s25, 49152'); a('s_lshl_b32 s35, s24, 11'); a('s_add_u32 s35, s35, s34'); a('v_add_u32 v2, s35, v0')
    a('s_lshl_b32 s35, s24, 10'); a('s_add_u32 s35, s35, s34'); a('s_add_u32 s35, s35, 8192'); a('v_add_u32 v3, s35, v0')
    a('s_waitcnt lgkmcnt(0)'); a('s_barrier')
    for k in range(3):
        for t in range(4):
            if k < 2: a(f'ds_read_b128 {vr(32+(k*4+t)*4)}, v2 offset:{t*12288+k*1024}')
            else: a(f'ds_read_b128 {vr(32+(k*4+t)*4)}, v3 offset:{t*12288}')
    a('s_lshl_b32 s34, s57, 3'); a('s_add_u32 s34, s34, s21')
    a('s_lshl_b32 s62, s34, 13'); a('s_lshl_b32 s35, s24, 11'); a('s_add_u32 s62, s62, s35'); a(f's_add_u32 s62, s62, {WS_KVP}')
    a('s_lshl_b32 s63, s34, 8'); a('s_lshl_b32 s35, s24, 6'); a('s_add_u32 s63, s63, s35'); a(f's_add_u32 s63, s63, {WS_ZP}')
    a(f'v_and_b32 v4, 15, v{L}'); a('v_cmp_eq_u32 vcc, 0, v4'); a(f'v_lshrrev_b32 v4, 4, v{L}'); a('v_lshlrev_b32 v4, 4, v4')
    a('v_mov_b32 v5, 0x7ffff000'); a('v_cndmask_b32 v4, v5, v4, vcc')
    for k in range(3):
        a(f's_waitcnt lgkmcnt({8-4*k})')
        b = 32 + k*16
        for h2 in range(2):
            a(f'v_pk_add_f32 {vr(b+2*h2,2)}, {vr(b+2*h2,2)}, {vr(b+4+2*h2,2)}')
            a(f'v_pk_add_f32 {vr(b+8+2*h2,2)}, {vr(b+8+2*h2,2)}, {vr(b+12+2*h2,2)}')
        for h2 in range(2):
            a(f'v_pk_add_f32 {vr(b+2*h2,2)}, {vr(b+2*h2,2)}, {vr(b+8+2*h2,2)}')
        if k < 2: a(f'buffer_store_dwordx4 {vr(b)}, v{VST}, s[12:15], s62 offen offset:{k*256}')
        else: a(f'buffer_store_dwordx4 {vr(b)}, v4, s[12:15], s63 offen')
```

```python
from common import *
import common
OPT = {}
RING0 = 0; STG = 32768
AFR = 3*STG
WPH = AFR + 4096
ZT = WPH + 2048
ZERO = ZT + 128
FLAG = ZERO + 16
K2_LDS = FLAG + 112
K2_VGPR = 176
CSHIFT = 64.0
VL = 0; V16 = 1; VCUR = 2; VNXT = 3
Q = 8; NEGM = 16; KB = (32, 40); VB = (48, 56); S = (64, 80); P = 96; O = 104; LS = 120; ONES = 124
KVP_R = 128; ZR = 160; GR = 161; QA_R = 164

def ring(s, inc, size, t='s34'):
    return [f's_add_u32 s{s}, s{s}, {inc}', f's_sub_u32 {t}, s{s}, {size}', f's_min_u32 s{s}, s{s}, {t}']
def QK(Sd, K, C):
    return [f'v_mfma_f32_32x32x16_bf16 {vr(Sd,16)}, {vr(K)}, {vr(Q)}, {C}',
            f'v_mfma_f32_32x32x16_bf16 {vr(Sd,16)}, {vr(K+4)}, {vr(Q+4)}, {vr(Sd,16)}']
def dma_stage(a_list):
    r = ['s_mov_b32 m0, s25', 's_nop 0']
    for i in range(4): r.append(f'buffer_load_dwordx4 v{V16}, s[12:15], s24 offen offset:{i*1024} lds')
    r += ['s_add_u32 s24, s24, 32768'] + ring(25, STG, 3*STG)
    return r

def tile(a, u):
    cur = u & 1; nx = cur ^ 1
    Sc, Sn = S[cur], S[nx]
    ex = [f'v_exp_f32 v{Sc+i}, v{Sc+i}' for i in range(16)]
    cv = [f'v_cvt_pk_bf16_f32 v{P+i}, v{Sc+2*i}, v{Sc+2*i+1}' for i in range(8)]
    qk = QK(Sn, KB[nx], vr(NEGM,16))
    pv = [f'v_mfma_f32_32x32x16_bf16 {vr(O,16)}, {vr(VB[cur])}, {vr(P)}, {vr(O,16)}',
          f'v_mfma_f32_16x16x32_bf16 {vr(LS)}, {vr(ONES)}, {vr(P)}, {vr(LS)}',
          f'v_mfma_f32_32x32x16_bf16 {vr(O,16)}, {vr(VB[cur]+4)}, {vr(P+4)}, {vr(O,16)}',
          f'v_mfma_f32_16x16x32_bf16 {vr(LS)}, {vr(ONES)}, {vr(P+4)}, {vr(LS)}']
    ku = u + 2; vu = u + 1
    kreg, ko = (VCUR, ku*4096) if ku < 8 else (VNXT, (ku-8)*4096)
    vreg, vo = (VCUR, vu*4096) if vu < 8 else (VNXT, (vu-8)*4096)
    kr = [f'ds_read_b128 {vr(KB[cur])}, v{kreg} offset:{ko}', f'ds_read_b128 {vr(KB[cur]+4)}, v{kreg} offset:{ko+1024}']
    vrd = [f'ds_read_b128 {vr(VB[nx])}, v{vreg} offset:{vo+2048}', f'ds_read_b128 {vr(VB[nx]+4)}, v{vreg} offset:{vo+3072}']
    seq = ['s_waitcnt lgkmcnt(2)']
    dm = []
    if u == 6:
        seq += ['s_waitcnt vmcnt(0)', 's_barrier']
        lab = a.label('K2_nodma')
        dm = ['s_cmp_gt_u32 s27, 2', f's_cbranch_scc0 {lab}'] + dma_stage(a) + [f'{lab}:']
    seq += [qk[0]] + ex[0:4] + [qk[1]] + dm + ex[4:8] + cv[0:4] + kr
    seq += ex[8:10] + ['s_waitcnt lgkmcnt(2)', pv[0]] + ex[10:12] + [pv[1]] + ex[12:16] + cv[4:8]
    seq += ['s_nop 1', pv[2], pv[3]] + vrd
    for x in seq: a(x)

def gen_k2(a, name):
    kernel_begin(a, name)
    a('s_cmp_ge_u32 s2, 256'); a('s_cbranch_scc1 K2_end')
    stamp(a, 0)
    a('s_load_dwordx2 s[40:41], s[0:1], 16')
    a('s_load_dwordx2 s[50:51], s[0:1], 80')
    a('s_and_b32 s3, s2, 7'); a('s_lshr_b32 s34, s2, 3')
    a('s_lshl_b32 s22, s3, 2'); a('s_and_b32 s35, s34, 3'); a('s_add_u32 s22, s22, s35')
    a('s_lshr_b32 s21, s34, 2')
    a('v_lshrrev_b32 v4, 6, v0'); a(f'v_and_b32 v{VL}, 63, v0')
    a('v_readfirstlane_b32 s20, v4')
    a(f'v_lshlrev_b32 v{V16}, 4, v{VL}')
    a(f'v_lshrrev_b32 v4, 4, v{VL}'); a(f'v_lshrrev_b32 v5, 2, v{VL}'); a('v_xor_b32 v4, v4, v5'); a('v_and_b32 v4, 1, v4')
    a('v_cmp_eq_u32 vcc, 0, v4'); a('v_mov_b32 v5, 0x3f803f80'); a('v_mov_b32 v6, 0')
    for r in range(4): a(f'v_cndmask_b32 v{ONES+r}, v6, v5, vcc')
    a('s_mov_b32 s28, 0')
    a('s_lshl_b32 s30, s21, 3'); a('s_add_u32 s30, s30, s20')
    a('s_lshl_b32 s31, s22, 17'); a('s_lshl_b32 s34, s30, 11'); a('s_add_u32 s31, s31, s34')
    a('s_lshr_b32 s34, s30, 2'); a('s_lshl_b32 s34, s34, 6'); a('s_add_u32 s34, s34, s22'); a('s_lshl_b32 s34, s34, 2')
    a('s_and_b32 s35, s30, 3'); a('s_add_u32 s34, s34, s35'); a('s_lshl_b32 s29, s34, 11'); a(f's_add_u32 s29, s29, {WS_O}')
    a('s_waitcnt lgkmcnt(0)')
    srd(a, 12, 50, 51, ws_size())
    srd(a, 16, 40, 41, 65536)
    a('K2_restart:')
    a('s_cmp_ge_u32 s20, 2'); a('s_cbranch_scc1 K2_nowp')
    a('s_lshl_b32 s34, s20, 10'); a(f's_add_u32 m0, s34, {WPH}'); a('s_lshl_b32 s35, s22, 11'); a('s_add_u32 s35, s35, s34')
    a(f'buffer_load_dwordx4 v{V16}, s[16:19], s35 offen lds')
    a('K2_nowp:')
    a(f's_add_u32 s34, s31, {WS_QB}')
    a(f'buffer_load_dwordx4 {vr(Q)}, v{V16}, s[12:15], s34 offen'); a(f'buffer_load_dwordx4 {vr(Q+4)}, v{V16}, s[12:15], s34 offen offset:1024')
    a('s_lshl_b32 s24, s22, 18'); a('s_lshl_b32 s34, s20, 12'); a('s_add_u32 s24, s24, s34')
    a('s_lshl_b32 s25, s20, 12')
    for x in dma_stage(a): a(x)
    for x in dma_stage(a): a(x)
    a('s_lshl_b32 s34, s22, 16'); a('s_lshl_b32 s35, s20, 10'); a('s_add_u32 s34, s34, s35'); a(f's_add_u32 s34, s34, {WS_KVP}')
    for tb in range(8):
        a(f'buffer_load_dwordx4 {vr(KVP_R+4*tb)}, v{V16}, s[12:15], s34 offen')
        if tb < 7: a('s_add_u32 s34, s34, 8192')
    a(f'v_lshrrev_b32 v4, 3, v{VL}'); a('v_lshlrev_b32 v4, 8, v4'); a(f'v_and_b32 v5, 7, v{VL}'); a('v_lshl_add_u32 v4, v5, 2, v4')
    a('s_lshl_b32 s34, s22, 11'); a('s_lshl_b32 s35, s20, 5'); a('s_add_u32 s34, s34, s35'); a(f's_add_u32 s34, s34, {WS_ZP}')
    a(f'buffer_load_dword v{ZR}, v4, s[12:15], s34 offen')
    a(f's_add_u32 s34, s31, {WS_QA}')
    a(f'buffer_load_dwordx4 {vr(QA_R)}, v{V16}, s[12:15], s34 offen'); a(f'buffer_load_dwordx4 {vr(QA_R+4)}, v{V16}, s[12:15], s34 offen offset:1024')
    a(f'v_and_b32 v4, 31, v{VL}'); a('v_lshlrev_b32 v4, 2, v4'); a('s_lshl_b32 s34, s30, 7'); a(f's_add_u32 s34, s34, {WS_G}')
    a(f'buffer_load_dword v{GR}, v4, s[12:15], s34 offen')
    a('v_mov_b32 v4, 0'); a('v_mov_b32 v5, 0'); a('v_mov_b32 v6, 0'); a('v_mov_b32 v7, 0')
    a(f'v_mov_b32 v{VCUR}, {ZERO}')
    a(f'ds_write_b128 v{VCUR}, v[4:7]'); a(f'ds_write_b32 v{VCUR}, v4 offset:16')
    for r in range(16): a(f'v_mov_b32 v{O+r}, 0')
    for r in range(4): a(f'v_mov_b32 v{LS+r}, 0')
    a(f'v_mov_b32 v{VCUR}, v{V16}'); a(f'v_add_u32 v{VNXT}, {STG}, v{V16}'); a(f's_mov_b32 s26, {STG}')
    a('s_waitcnt vmcnt(16) lgkmcnt(0)'); a('s_barrier')
    stamp(a, 1)
    for k in range(2):
        a(f'ds_read_b128 {vr(KB[k])}, v{VCUR} offset:{k*4096}'); a(f'ds_read_b128 {vr(KB[k]+4)}, v{VCUR} offset:{k*4096+1024}')
    a(f'ds_read_b128 {vr(VB[0])}, v{VCUR} offset:2048'); a(f'ds_read_b128 {vr(VB[0]+4)}, v{VCUR} offset:3072')
    a('s_cmp_lg_u32 s28, 0'); a('s_cbranch_scc1 K2_havem')
    a('s_waitcnt lgkmcnt(4)')
    for x in QK(S[0], KB[0], '0'): a(x)
    a('s_waitcnt lgkmcnt(2)')
    for x in QK(S[1], KB[1], '0'): a(x)
    a('s_nop 9')
    a(f'v_max3_f32 v4, v{S[0]}, v{S[0]+1}, v{S[0]+2}')
    for i in range(3, 15, 2): a(f'v_max3_f32 v4, v4, v{S[0]+i}, v{S[0]+i+1}')
    a(f'v_max3_f32 v5, v{S[0]+15}, v{S[1]}, v{S[1]+1}')
    for i in range(2, 16, 2): a(f'v_max3_f32 v5, v5, v{S[1]+i}, v{S[1]+i+1}')
    a('v_max_f32 v4, v4, v5'); a('v_mov_b32 v5, v4'); a('s_nop 1'); a('v_permlane32_swap_b32 v4, v5'); a('v_max_f32 v4, v4, v5')
    a(f'v_add_f32 v4, {fhex(CSHIFT)}, v4')
    for r in range(16): a(f'v_sub_f32 v{NEGM+r}, 0, v4')
    a('K2_havem:')
    a('s_waitcnt lgkmcnt(0)'); a('s_nop 1')
    for x in QK(S[0], KB[0], vr(NEGM,16)): a(x)
    a('s_mov_b32 s27, 8')
    a('s_nop 9')
    stamp(a, 2)
    a('K2_loop:')
    for u in range(8): tile(a, u)
    a(f'v_mov_b32 v{VCUR}, v{VNXT}')
    for x in ring(26, STG, 3*STG): a(x)
    a(f'v_add_u32 v{VNXT}, s26, v{V16}')
    a('s_sub_u32 s27, s27, 1'); a('s_cmp_lg_u32 s27, 0'); a('s_cbranch_scc1 K2_loop')
    stamp(a, 3)
    R = KVP_R
    for h2 in range(2):
        for p in range(0, 8, 2): a(f'v_pk_add_f32 {vr(R+4*p+2*h2,2)}, {vr(R+4*p+2*h2,2)}, {vr(R+4*p+4+2*h2,2)}')
    for h2 in range(2):
        for p in (0, 4): a(f'v_pk_add_f32 {vr(R+4*p+2*h2,2)}, {vr(R+4*p+2*h2,2)}, {vr(R+4*p+8+2*h2,2)}')
    for h2 in range(2): a(f'v_pk_add_f32 {vr(R+2*h2,2)}, {vr(R+2*h2,2)}, {vr(R+16+2*h2,2)}')
    a(f'v_cvt_pk_bf16_f32 v{R}, v{R}, v{R+1}'); a(f'v_cvt_pk_bf16_f32 v{R+1}, v{R+2}, v{R+3}')
    a('s_lshr_b32 s34, s20, 1'); a('s_lshl_b32 s34, s34, 10'); a('s_and_b32 s35, s20, 1'); a('s_lshl_b32 s35, s35, 3'); a('s_add_u32 s34, s34, s35')
    a(f's_add_u32 s34, s34, {AFR}'); a(f'v_add_u32 v4, s34, v{V16}')
    a(f'ds_write_b64 v4, {vr(R,2)}')
    a(f'v_add_f32_dpp v{ZR}, v{ZR}, v{ZR} row_ror:8 row_mask:0xf bank_mask:0xf')
    a('s_nop 0')
    a(f'v_mov_b32 v5, v{ZR}'); a('s_nop 1'); a(f'v_permlane16_swap_b32 v{ZR}, v5'); a(f'v_add_f32 v{ZR}, v{ZR}, v5')
    a(f'v_mov_b32 v5, v{ZR}'); a('s_nop 1'); a(f'v_permlane32_swap_b32 v{ZR}, v5'); a(f'v_add_f32 v{ZR}, v{ZR}, v5')
    a(f'v_cvt_pk_bf16_f32 v{ZR}, v{ZR}, v{ZR}')
    a('s_lshr_b32 s34, s20, 1'); a('s_lshl_b32 s34, s34, 5'); a('s_and_b32 s35, s20, 1'); a('s_lshl_b32 s35, s35, 3'); a('s_add_u32 s34, s34, s35')
    a(f's_add_u32 s34, s34, {ZT}')
    a(f'v_bfe_u32 v5, v{VL}, 2, 1'); a('v_lshlrev_b32 v5, 4, v5'); a(f'v_and_b32 v6, 3, v{VL}'); a('v_lshl_add_u32 v5, v6, 1, v5'); a('v_add_u32 v5, s34, v5')
    a(f'ds_write_b16 v5, v{ZR}')
    a('s_cmp_lg_u32 s28, 0'); a('s_cbranch_scc1 K2_nochk')
    a(f'v_add_f32_e64 v4, |v{O}|, |v{O+1}|'); a(f'v_add_f32_e64 v5, |v{O+2}|, |v{O+3}|')
    for i in range(4, 16, 2):
        a(f'v_add_f32_e64 v4, v4, |v{O+i}|'); a(f'v_add_f32_e64 v5, v5, |v{O+i+1}|')
    a('v_add_f32 v4, v4, v5')
    a(f's_mov_b32 s34, {fhex(2.0**110)}'); a(f's_mov_b32 s35, {fhex(2.0**124)}')
    a(f'v_cmp_ngt_f32 s[36:37], s34, v{LS}')
    a('v_cmp_ngt_f32 s[38:39], s35, v4')
    a(f's_mov_b32 s34, {fhex(2.0**-100)}')
    a('v_cmp_nlt_f32 vcc, s34, v4')
    a('s_nop 1')
    a('s_or_b64 s[36:37], s[36:37], s[38:39]'); a('s_or_b64 vcc, vcc, s[36:37]')
    if OPT.get('forcefb'): a('s_mov_b64 vcc, 1')
    a('s_cbranch_vccz K2_nochk')
    a(f'v_mov_b32 v4, {FLAG}'); a('v_mov_b32 v5, 1'); a('ds_write_b32 v4, v5')
    a('K2_nochk:')
    a('s_waitcnt lgkmcnt(0)'); a('s_barrier')
    a(f'v_mov_b32 v4, {FLAG}'); a('ds_read_b32 v5, v4')
    KVF = 32; ZF = 48; WF = 128
    a(f'v_add_u32 v7, {AFR}, v{V16}')
    for fs in range(4): a(f'ds_read_b128 {vr(KVF+4*fs)}, v7 offset:{fs*1024}')
    a(f'v_lshrrev_b32 v6, 5, v{VL}'); a('v_lshlrev_b32 v6, 4, v6'); a(f'v_add_u32 v6, {ZT}, v6')
    a(f'v_cmp_eq_u32 vcc, 0, v{ONES}')
    for fs in range(4):
        a(f'v_add_u32 v7, {fs*32}, v6'); a(f'v_mov_b32 v{ZF+4*fs}, {ZERO}'); a(f'v_cndmask_b32 v7, v7, v{ZF+4*fs}, vcc')
        a(f'ds_read_b128 {vr(ZF+4*fs)}, v7')
    a(f'v_lshrrev_b32 v6, 5, v{VL}'); a(f'v_bfe_u32 v7, v{VL}, 2, 2'); a('v_lshl_add_u32 v6, v6, 2, v7'); a('v_lshlrev_b32 v6, 6, v6')
    a(f'v_bfe_u32 v7, v{VL}, 4, 1'); a('v_lshl_add_u32 v6, v7, 5, v6'); a(f'v_and_b32 v7, 3, v{VL}'); a('v_lshl_add_u32 v6, v7, 3, v6'); a(f'v_add_u32 v6, {WPH}, v6')
    for s in range(2):
        for jj in range(2): a(f'ds_read_b64_tr_b16 {vr(WF+4*s+2*jj,2)}, v6 offset:{s*512+jj*1024}')
    a('s_waitcnt lgkmcnt(12)')
    a('v_readfirstlane_b32 s34, v5'); a('s_nop 0')
    a('s_cmp_lg_u32 s34, 0'); a('s_cbranch_scc1 K2_fallback')
    a(f'v_rcp_f32 v4, v{LS}'); a(f'v_sub_f32 v5, 1.0, v{GR}'); a('s_nop 0'); a('v_mul_f32 v4, v4, v5')
    for i in range(16): a(f'v_mul_f32 v{O+i}, v4, v{O+i}')
    for i in range(8): a(f'v_cvt_pk_bf16_f32 v{P+i}, v{O+2*i}, v{O+2*i+1}')
    a(f's_add_u32 s34, s29, {32*4*2048}')
    a(f'buffer_store_dwordx4 {vr(P)}, v{V16}, s[12:15], s34 offen'); a(f'buffer_store_dwordx4 {vr(P+4)}, v{V16}, s[12:15], s34 offen offset:1024')
    PQ = S[0]; E = (S[0], S[1])
    a('s_waitcnt lgkmcnt(0)')
    a(f'v_mfma_f32_32x32x16_bf16 {vr(PQ,16)}, {vr(WF)}, {vr(QA_R)}, 0')
    a(f'v_mfma_f32_32x32x16_bf16 {vr(PQ,16)}, {vr(WF+4)}, {vr(QA_R+4)}, {vr(PQ,16)}')
    a(f's_mov_b32 s60, {fhex(LOG2E)}'); a(f's_mov_b32 s61, {fhex(-LOG2E)}')
    a('s_nop 7'); a('s_nop 1')
    a(f'v_max3_f32 v4, v{PQ}, v{PQ+1}, v{PQ+2}'); a(f'v_min3_f32 v5, v{PQ}, v{PQ+1}, v{PQ+2}')
    for i in range(3, 15, 2):
        a(f'v_max3_f32 v4, v4, v{PQ+i}, v{PQ+i+1}'); a(f'v_min3_f32 v5, v5, v{PQ+i}, v{PQ+i+1}')
    a(f'v_max_f32 v4, v4, v{PQ+15}'); a(f'v_min_f32 v5, v5, v{PQ+15}')
    a('v_mov_b32 v6, v4'); a('v_mov_b32 v7, v5'); a('s_nop 0')
    a('v_permlane32_swap_b32 v4, v6'); a('v_permlane32_swap_b32 v5, v7')
    a('v_max_f32 v4, v4, v6'); a('v_min_f32 v5, v5, v7')
    a('v_mul_f32 v4, s61, v4'); a('v_mul_f32 v5, s60, v5')
    for i in range(16): a(f'v_fma_f32 v{E[1]+i}, v{PQ+i}, s61, v5')
    for i in range(16): a(f'v_fma_f32 v{E[0]+i}, v{PQ+i}, s60, v4')
    for sg in (1, 0):
        for i in range(16): a(f'v_exp_f32 v{E[sg]+i}, v{E[sg]+i}')
    EP = (96, 136)
    a('s_nop 0')
    for sg in (1, 0):
        for i in range(8): a(f'v_cvt_pk_bf16_f32 v{EP[sg]+i}, v{E[sg]+2*i}, v{E[sg]+2*i+1}')
    NUM = (64, 80); DEN = (144, 148); SUM = (152, 156)
    a('s_nop 1')
    for sg in (1, 0):
        for s in range(2):
            fs = sg*2 + s
            a(f'v_mfma_f32_32x32x16_bf16 {vr(NUM[sg],16)}, {vr(KVF+4*fs)}, {vr(EP[sg]+4*s)}, {"0" if s == 0 else vr(NUM[sg],16)}')
            a(f'v_mfma_f32_16x16x32_bf16 {vr(DEN[sg])}, {vr(ZF+4*fs)}, {vr(EP[sg]+4*s)}, {"0" if s == 0 else vr(DEN[sg])}')
            a(f'v_mfma_f32_16x16x32_bf16 {vr(SUM[sg])}, {vr(ONES)}, {vr(EP[sg]+4*s)}, {"0" if s == 0 else vr(SUM[sg])}')
    a('s_nop 7')
    a(f'v_rcp_f32 v4, v{SUM[0]}'); a(f'v_rcp_f32 v5, v{SUM[1]}'); a('s_nop 0')
    a(f'v_mul_f32 v6, v{DEN[0]}, v4'); a(f'v_fmac_f32 v6, v{DEN[1]}, v5'); a(f'v_add_f32 v6, {fhex(1e-6)}, v6')
    a('v_rcp_f32 v6, v6'); a('s_nop 0'); a(f'v_mul_f32 v6, v6, v{GR}')
    a('v_mul_f32 v4, v4, v6'); a('v_mul_f32 v5, v5, v6')
    for i in range(16): a(f'v_mul_f32 v{NUM[0]+i}, v4, v{NUM[0]+i}')
    for i in range(16): a(f'v_fmac_f32 v{NUM[0]+i}, v5, v{NUM[1]+i}')
    for i in range(8): a(f'v_cvt_pk_bf16_f32 v{32+i}, v{NUM[0]+2*i}, v{NUM[0]+2*i+1}')
    a(f'buffer_store_dwordx4 {vr(32)}, v{V16}, s[12:15], s29 offen'); a(f'buffer_store_dwordx4 {vr(36)}, v{V16}, s[12:15], s29 offen offset:1024')
    stamp(a, 4)
    a('s_waitcnt vmcnt(0)')
    stamp_flush(a, 5, 1, 12, 20, 168)
    a('s_endpgm')
    a('K2_fallback:')
    a('s_waitcnt lgkmcnt(0)'); a('s_barrier')
    a('s_lshl_b32 s24, s22, 18'); a('s_mov_b32 s27, 64')
    a('v_mov_b32 v4, 0xff800000')
    a('K2_fbl:')
    a(f'buffer_load_dwordx4 {vr(KB[0])}, v{V16}, s[12:15], s24 offen'); a(f'buffer_load_dwordx4 {vr(KB[0]+4)}, v{V16}, s[12:15], s24 offen offset:1024')
    a('s_waitcnt vmcnt(0)')
    for x in QK(S[0], KB[0], '0'): a(x)
    a('s_nop 7'); a('s_nop 3')
    for i in range(0, 16, 2): a(f'v_max3_f32 v4, v4, v{S[0]+i}, v{S[0]+i+1}')
    a('s_add_u32 s24, s24, 4096'); a('s_sub_u32 s27, s27, 1'); a('s_cmp_lg_u32 s27, 0'); a('s_cbranch_scc1 K2_fbl')
    a('v_mov_b32 v5, v4'); a('s_nop 1'); a('v_permlane32_swap_b32 v4, v5'); a('v_max_f32 v4, v4, v5')
    for r in range(16): a(f'v_sub_f32 v{NEGM+r}, 0, v4')
    a('s_mov_b32 s28, 1')
    a('s_branch K2_restart')
    a('K2_end:')
    a('s_endpgm')
```

```python
from common import *
import common
OPT = {}
K3_LDS = 131072
K3_VGPR = 144
ACC = 0; WF = (32, 48); OF = 64
VO = 128; VWD = 129; VR0 = 130; VR1 = 131; VL = 132
NK = 32
def acc(tb, nb): return ACC + (tb*4 + nb)*4
def dma_w(n):
    return [f's_add_u32 m0, s30, {(n & 15)*4096}', [f'buffer_load_dwordx4 v{VWD}, s[8:11], s27 offen lds', 's_add_u32 s27, s27, 65536']]
def load_o(n):
    r = OF + (n & 7)*8
    return [f'buffer_load_dwordx4 {vr(r)}, v{VO}, s[12:15], s26 offen', f'buffer_load_dwordx4 {vr(r+4)}, v{VO}, s[12:15], s26 offen offset:256', 's_add_u32 s26, s26, 8192']
def reads(n):
    st = WF[n & 1]; out = []
    for nb in range(4):
        for jj in range(2):
            out.append(f'ds_read_b64_tr_b16 {vr(st+nb*4+jj*2,2)}, v{VR0 + (nb & 1)} offset:{(n & 15)*4096 + jj*512 + (nb >> 1)*256}')
    return out
def ops_after(n):
    c = 0
    for k in range(n - 7, n):
        if k < 0: c += 3
        else:
            if k + 12 < NK: c += 1
            if k + 8 < NK: c += 2
    return c

def gen_k3(a, name):
    kernel_begin(a, name)
    a('s_cmp_ge_u32 s2, 256'); a('s_cbranch_scc1 K3_end')
    stamp(a, 0)
    a('s_load_dwordx2 s[36:37], s[0:1], 24')
    a('s_load_dwordx2 s[38:39], s[0:1], 48')
    a('s_load_dwordx2 s[40:41], s[0:1], 64')
    a('s_load_dwordx2 s[50:51], s[0:1], 80')
    a('s_and_b32 s3, s2, 7'); a('s_lshr_b32 s34, s2, 3')
    a('s_lshr_b32 s21, s3, 1'); a('s_lshl_b32 s21, s21, 2'); a('s_and_b32 s35, s34, 3'); a('s_add_u32 s21, s21, s35')
    a('s_and_b32 s22, s3, 1'); a('s_lshl_b32 s22, s22, 3'); a('s_lshr_b32 s35, s34, 2'); a('s_add_u32 s22, s22, s35')
    a('v_lshrrev_b32 v1, 6, v0'); a(f'v_and_b32 v{VL}, 63, v0')
    a('v_readfirstlane_b32 s20, v1')
    L = VL
    a(f'v_lshrrev_b32 v2, 4, v{L}'); a(f'v_and_b32 v3, 15, v{L}')
    a('s_lshr_b32 s25, s20, 2'); a('s_and_b32 s24, s20, 3')
    a('v_lshlrev_b32 v4, 9, v2'); a(f'v_lshl_add_u32 v{VO}, v3, 4, v4')
    a(f'v_lshrrev_b32 v4, 5, v{L}'); a('v_lshlrev_b32 v4, 3, v4'); a(f'v_bfe_u32 v5, v{L}, 1, 2'); a('v_add_u32 v4, v4, v5'); a('v_lshlrev_b32 v4, 11, v4')
    a('s_and_b32 s34, s20, 1'); a(f'v_bfe_u32 v5, v{L}, 3, 2'); a('v_xor_b32 v5, s34, v5'); a('v_lshl_add_u32 v4, v5, 5, v4')
    a(f'v_and_b32 v5, 1, v{L}'); a(f'v_lshl_add_u32 v{VWD}, v5, 4, v4')
    a('v_lshlrev_b32 v4, 10, v2'); a('v_and_b32 v5, 1, v2'); a('v_lshl_add_u32 v4, v5, 7, v4')
    a(f'v_bfe_u32 v5, v{L}, 2, 2'); a('v_lshl_add_u32 v4, v5, 5, v4'); a(f'v_and_b32 v5, 3, v{L}'); a('v_lshl_add_u32 v4, v5, 3, v4')
    a('s_lshl_b32 s34, s25, 16'); a(f'v_add_u32 v{VR0}, s34, v4'); a(f'v_xor_b32 v{VR1}, 128, v{VR0}')
    a('s_lshl_b32 s30, s25, 16'); a('s_lshl_b32 s34, s24, 10'); a('s_add_u32 s30, s30, s34')
    a('s_lshr_b32 s27, s24, 1'); a('s_lshl_b32 s27, s27, 4'); a('s_and_b32 s34, s24, 1'); a('s_lshl_b32 s34, s34, 2'); a('s_add_u32 s27, s27, s34')
    a('s_lshl_b32 s27, s27, 11'); a('s_lshl_b32 s34, s22, 7'); a('s_add_u32 s27, s27, s34')
    a('s_lshl_b32 s26, s21, 6'); a('s_lshl_b32 s34, s25, 5'); a('s_add_u32 s26, s26, s34'); a('s_lshl_b32 s26, s26, 2'); a('s_add_u32 s26, s26, s24')
    a('s_lshl_b32 s26, s26, 11'); a(f's_add_u32 s26, s26, {WS_O}')
    a('s_waitcnt lgkmcnt(0)')
    a('s_cmp_eq_u32 s25, 0')
    a('s_cselect_b32 s8, s36, s38'); a('s_cselect_b32 s9, s37, s39'); a('s_mov_b32 s10, 2097152'); a('s_mov_b32 s11, 0x20000')
    srd(a, 12, 50, 51, ws_size())
    srd(a, 16, 40, 41, 4194304)
    def W(n):
        d = dma_w(n); a(d[0]); a('s_nop 0')
        for x in d[1]: a(x)
    for n in range(4): W(n)
    for n in range(8):
        W(n + 4)
        for x in load_o(n): a(x)
    a('s_waitcnt vmcnt(21)'); a('s_barrier')
    stamp(a, 1)
    for x in reads(0): a(x)
    for n in range(NK):
        vm = ops_after(n)
        a(f's_waitcnt vmcnt({vm}) lgkmcnt(0)')
        if n % 4 == 3 and n + 1 < NK: a('s_barrier')
        st = WF[n & 1]; of = OF + (n & 7)*8
        m = []
        for nb in range(4):
            for tb in range(2):
                d = acc(tb, nb)
                m.append(f'v_mfma_f32_16x16x32_bf16 {vr(d)}, {vr(st+nb*4)}, {vr(of+tb*4)}, {"0" if n == 0 else vr(d)}')
        rd = reads(n + 1) if n + 1 < NK else []
        pre = []
        if n + 12 < NK: pre = dma_w(n + 12)
        for i, x in enumerate(m):
            a(x)
            if i < len(rd): a(rd[i])
            if pre and i == 1: a(pre[0])
            if pre and i == 2:
                for y in pre[1]: a(y)
        if n + 8 < NK:
            for x in load_o(n + 8): a(x)
    stamp(a, 2)
    a('s_lshl_b32 s34, s20, 12'); a(f'v_lshlrev_b32 v40, 4, v{L}'); a('v_add_u32 v41, s34, v40')
    a('s_xor_b32 s34, s34, 16384'); a('v_add_u32 v42, s34, v40')
    a('s_cmp_eq_u32 s25, 0'); a('s_cbranch_scc0 K3_g1')
    a('s_nop 2')
    for nb in range(4): a(f'ds_write_b128 v41, {vr(acc(1,nb))} offset:{nb*1024}')
    a('s_branch K3_gj')
    a('K3_g1:')
    a('s_nop 2')
    for nb in range(4): a(f'ds_write_b128 v41, {vr(acc(0,nb))} offset:{nb*1024}')
    a('s_waitcnt lgkmcnt(0)')
    for r in range(16): a(f'v_mov_b32 v{r}, v{16+r}')
    a('K3_gj:')
    a('s_waitcnt lgkmcnt(0)'); a('s_barrier')
    for nb in range(4): a(f'ds_read_b128 {vr(48+nb*4)}, v42 offset:{nb*1024}')
    a('s_lshl_b32 s34, s21, 7'); a('s_lshl_b32 s35, s24, 5'); a('s_add_u32 s34, s34, s35'); a('s_lshl_b32 s35, s25, 4'); a('s_add_u32 s34, s34, s35')
    a('s_lshl_b32 s34, s34, 11'); a('s_lshl_b32 s35, s22, 7'); a('s_add_u32 s34, s34, s35')
    a(f'v_and_b32 v43, 15, v{L}'); a('v_lshlrev_b32 v43, 11, v43'); a(f'v_lshrrev_b32 v44, 4, v{L}'); a('v_lshl_add_u32 v43, v44, 3, v43')
    for nb in range(4):
        a(f's_waitcnt lgkmcnt({3-nb})')
        a(f'v_pk_add_f32 {vr(nb*4,2)}, {vr(nb*4,2)}, {vr(48+nb*4,2)}'); a(f'v_pk_add_f32 {vr(nb*4+2,2)}, {vr(nb*4+2,2)}, {vr(48+nb*4+2,2)}')
        a(f'v_cvt_pk_bf16_f32 v{64+2*nb}, v{nb*4}, v{nb*4+1}'); a(f'v_cvt_pk_bf16_f32 v{64+2*nb+1}, v{nb*4+2}, v{nb*4+3}')
        a(f'buffer_store_dwordx2 {vr(64+2*nb,2)}, v43, s[16:19], s34 offen offset:{nb*32}')
    stamp(a, 3)
    a('s_waitcnt vmcnt(0)')
    stamp_flush(a, 4, 2, 12, 20, 136)
    a('K3_end:')
    a('s_endpgm')
```

```python
import sys
from common import *
import k1, hazard
def build(which=('k1',), out=None, stamps=False, opt=None):
    k1.OPT = dict(opt or {})
    try:
        import k2; k2.OPT = dict(opt or {})
        import k3; k3.OPT = dict(opt or {})
    except ImportError: pass
    import common
    common.STAMP = stamps
    a = Asm()
    hdr = ["; gated mix of hedgehog linear attention and softmax attention (generated by my gen/ scripts)",
           "; kernarg: 0 A_x, 8 A_wqkv, 16 A_w_phi, 24 A_wo, 32 B_x, 40 B_wqkv, 48 B_wo, 56 gate_w, 64 out, 72 dbg, 80 ws"]
    names = []
    if 'k1' in which:
        hdr.append(f'; @launch kernel=k1_kernel grid=(256,1,1) block=(512,1,1) lds={k1.K1_LDS}'); names.append(('k1_kernel', 248))
    if 'k2' in which:
        import k2
        hdr.append(f'; @launch kernel=k2_kernel grid=(256,1,1) block=(512,1,1) lds={k2.K2_LDS}'); names.append(('k2_kernel', k2.K2_VGPR))
    if 'k3' in which:
        import k3
        hdr.append(f'; @launch kernel=k3_kernel grid=(256,1,1) block=(512,1,1) lds={k3.K3_LDS}'); names.append(('k3_kernel', k3.K3_VGPR))
    a('.amdgcn_target "amdgcn-amd-amdhsa--gfx950"'); a('.text')
    if 'k1' in which: k1.gen_k1(a, 'k1_kernel')
    if 'k2' in which: k2.gen_k2(a, 'k2_kernel')
    if 'k3' in which: k3.gen_k3(a, 'k3_kernel')
    a('.section .rodata,"a"')
    for n, v in names: a(kernel_desc(n, v))
    txt = '\n'.join(hdr) + '\n' + a.text()
    hazard.check(txt)
    if out: open(out, 'w').write(txt)
    return txt
if __name__ == '__main__':
    which = sys.argv[2].split(',') if len(sys.argv) > 2 else ['k1', 'k2', 'k3']
    build(which, sys.argv[1], stamps=(len(sys.argv) > 3 and sys.argv[3] == 'stamp'))
```

```python
import sys
from common import *
import k1, hazard
def build(which=('k1',), out=None, stamps=False, opt=None):
    k1.OPT = dict(opt or {})
    try:
        import k2; k2.OPT = dict(opt or {})
        import k3; k3.OPT = dict(opt or {})
        import k23; k23.OPT = dict(opt or {})
    except ImportError: pass
    import common
    common.STAMP = stamps
    common.CYC = (opt or {}).get('cyc', 0)
    a = Asm()
    hdr = ["; gated mix of hedgehog linear attention and softmax attention (generated by my gen/ scripts)",
           "; kernarg: 0 A_x, 8 A_wqkv, 16 A_w_phi, 24 A_wo, 32 B_x, 40 B_wqkv, 48 B_wo, 56 gate_w, 64 out, 72 dbg, 80 ws"]
    names = []
    if 'k1' in which:
        hdr.append(f'; @launch kernel=k1_kernel grid=(256,1,1) block=(512,1,1) lds={k1.K1_LDS}'); names.append(('k1_kernel', 248))
    if 'k2' in which:
        import k2
        hdr.append(f'; @launch kernel=k2_kernel grid=(256,1,1) block=(512,1,1) lds={k2.K2_LDS}'); names.append(('k2_kernel', k2.K2_VGPR))
    if 'k3' in which:
        import k3
        hdr.append(f'; @launch kernel=k3_kernel grid=(256,1,1) block=(512,1,1) lds={k3.K3_LDS}'); names.append(('k3_kernel', k3.K3_VGPR))
    if 'k23' in which:
        import k23
        hdr.append(f'; @launch kernel=k23_kernel grid=(256,1,1) block=(512,1,1) lds={k23.K23_LDS}'); names.append(('k23_kernel', k23.K23_VGPR))
    if 'km' in which:
        import k1m, k23m
        k1m.OPT = dict(opt or {}); k23m.OPT = dict(opt or {})
        hdr.append(f'; @launch grid=(256,1,1) block=(512,1,1) lds={k23m.K23_LDS}'); names.append((KN + '_kernel', 256))
    if 'kf' in which:
        import k23
        k1.OPT['fused'] = 1; k23.OPT['fused'] = 1; k23.OPT['hsc'] = 1
        hdr.append(f'; @launch grid=(256,1,1) block=(512,1,1) lds={k23.K23_LDS}'); names.append((KN + '_kernel', 256))
    a('.amdgcn_target "amdgcn-amd-amdhsa--gfx950"'); a('.text')
    if 'k1' in which: k1.gen_k1(a, 'k1_kernel')
    if 'k2' in which: k2.gen_k2(a, 'k2_kernel')
    if 'k3' in which: k3.gen_k3(a, 'k3_kernel')
    if 'k23' in which: k23.gen_k23(a, 'k23_kernel')
    if 'kf' in which:
        k1.gen_k1(a, KN + '_kernel'); k23.gen_k23(a, KN + '_kernel')
    if 'km' in which:
        k1m.gen_k1(a, KN + '_kernel'); k23m.gen_k23(a, KN + '_kernel')
    a('.section .rodata,"a"')
    for n, v in names: a(kernel_desc(n, v))
    body = a.text()
    sf = (opt or {}).get('stflag')
    if sf:
        import re
        body = '\n'.join((l + ' ' + sf) if (l.startswith('buffer_store') and 's[12:15]' in l) else l for l in body.split('\n'))
    txt = '\n'.join(hdr) + '\n' + body
    if (opt or {}).get('al'):
        import align
        txt = align.align(txt, opt['al'], nop=bool(opt.get('alnop')))
    hazard.check(txt)
    if out: open(out, 'w').write(txt)
    return txt
if __name__ == '__main__':
    which = sys.argv[2].split(',') if len(sys.argv) > 2 else ['k1', 'k2', 'k3']
    build(which, sys.argv[1], stamps=(len(sys.argv) > 3 and sys.argv[3] == 'stamp'))
```

```python
KN = 'gated_mix__linear_kernel_hedgehog__softmax_full_mha__prompt'
WS_KVB = 0
WS_QB  = 8 << 20
WS_QA  = 12 << 20
WS_KVP = 16 << 20
WS_ZP  = 18 << 20
WS_G   = (18 << 20) + (512 << 10)
WS_FL  = (18 << 20) + (768 << 10)
FL_2A = WS_FL; FL_2B = WS_FL + 1024; FL_1B = WS_FL + 2048; FL_1A = WS_FL + 4096
WS_O   = 20 << 20
WS_SIZE = 28 << 20
LOG2E = 1.4426950408889634
import struct
def f2u(x): return struct.unpack('<I', struct.pack('<f', x))[0]
def fhex(x): return hex(f2u(x))

class Asm:
    def __init__(self):
        self.lines = []; self.nlabel = 0
    def __call__(self, s=''):
        for l in s.split('\n'): self.lines.append(l)
    def label(self, base='L'):
        self.nlabel += 1
        return f'{base}_{self.nlabel}'
    def text(self): return '\n'.join(self.lines) + '\n'

def vr(b, n=4): return f'v[{b}:{b+n-1}]' if n > 1 else f'v{b}'
def sr(b, n=4): return f's[{b}:{b+n-1}]' if n > 1 else f's{b}'

def kernel_begin(a, name):
    a(f'.globl {name}'); a('.p2align 8'); a(f'.type {name},@function'); a(f'{name}:')

def kernel_desc(name, vgpr, sgpr=102):
    accum = (vgpr + 3) // 4 * 4
    return f""".p2align 6
.amdhsa_kernel {name}
  .amdhsa_next_free_vgpr {vgpr}
  .amdhsa_next_free_sgpr {sgpr}
  .amdhsa_accum_offset {accum}
  .amdhsa_group_segment_fixed_size 0
  .amdhsa_kernarg_size 88
  .amdhsa_user_sgpr_count 2
  .amdhsa_user_sgpr_kernarg_segment_ptr 1
  .amdhsa_system_sgpr_workgroup_id_x 1
  .amdhsa_float_denorm_mode_32 3
.end_amdhsa_kernel
"""
def srd(a, s, lo, hi, size):
    a(f's_mov_b32 s{s}, s{lo}'); a(f's_mov_b32 s{s+1}, s{hi}')
    a(f's_mov_b32 s{s+2}, {size}'); a(f's_mov_b32 s{s+3}, 0x20000')

def interleave(main, extra, start=0, every=1):
    out = []; e = list(extra); k = 0
    for i, m in enumerate(main):
        out.append(m)
        if i >= start and (i - start) % every == 0 and k < len(e):
            x = e[k]; k += 1
            out += x if isinstance(x, list) else [x]
    while k < len(e):
        x = e[k]; k += 1
        out += x if isinstance(x, list) else [x]
    return out

STAMP = False
CYC = False
WS_STAMP = 32 << 20
def ws_size(): return (64 << 20) if STAMP else WS_SIZE
def stamp(a, k):
    if not STAMP: return
    if CYC == 2:
        a(f's_memtime s[{70+2*k}:{71+2*k}]'); a('s_waitcnt lgkmcnt(0)'); a(f's_mov_b32 s93, s{70+2*k}')
        a(f's_memrealtime s[{70+2*k}:{71+2*k}]'); a('s_waitcnt lgkmcnt(0)'); a(f's_mov_b32 s{71+2*k}, s93'); return
    a(f'{"s_memtime" if CYC else "s_memrealtime"} s[{70+2*k}:{71+2*k}]'); a('s_waitcnt lgkmcnt(0)')
def stamp_flush(a, n, kidx, wssrd, swave, vtmp, aux=None):
    if not STAMP: return
    aux = aux or {}
    if CYC == 2: aux = {k: 71 + 2*k for k in range(n)}
    a(f's_lshl_b32 s3, s2, 3'); a(f's_add_u32 s3, s3, s{swave}'); a('s_lshl_b32 s3, s3, 6'); a(f's_add_u32 s3, s3, {WS_STAMP + kidx*131072}')
    a(f'v_mbcnt_lo_u32_b32 v{vtmp}, -1, 0'); a(f'v_mbcnt_hi_u32_b32 v{vtmp}, -1, v{vtmp}')
    a(f'v_cmp_eq_u32 vcc, 0, v{vtmp}'); a(f'v_mov_b32 v{vtmp}, 0x7ffff000'); a(f'v_mov_b32 v{vtmp+1}, 0'); a('s_nop 0')
    a(f'v_cndmask_b32 v{vtmp}, v{vtmp}, v{vtmp+1}, vcc')
    for k in range(n):
        a(f'v_mov_b32 v{vtmp+2}, s{70+2*k}'); a(f'v_mov_b32 v{vtmp+3}, ' + (f's{aux[k]}' if k in aux else '0'))
        a(f'buffer_store_dwordx2 v[{vtmp+2}:{vtmp+3}], v{vtmp}, s[{wssrd}:{wssrd+3}], s3 offen offset:{k*8}')
        a('s_nop 1')
    a('s_waitcnt vmcnt(0)')
```

```python
import re, sys
REG = re.compile(r'\b([vsa])\[(\d+):(\d+)\]|\b([vsa])(\d+)\b|\b(vcc|exec|m0|scc)\b')
def regs_of(tok):
    out = set()
    for m in REG.finditer(tok):
        if m.group(1):
            for i in range(int(m.group(2)), int(m.group(3)) + 1): out.add(m.group(1) + str(i))
        elif m.group(4): out.add(m.group(4) + m.group(5))
        else: out.add(m.group(6))
    return out
TRANS = ('v_exp_', 'v_log_', 'v_rcp_', 'v_rsq_', 'v_sqrt_', 'v_sin_', 'v_cos_')
class I:
    def __init__(s, text, ln):
        s.text = text; s.ln = ln
        t = text.split(None, 1)
        s.op = t[0]
        rest = t[1] if len(t) > 1 else ''
        ops = [x.strip() for x in re.split(r',(?![^\[]*\])', rest)] if rest else []
        s.ops = ops
        op = s.op
        s.mfma = op.startswith(('v_mfma', 'v_smfmac'))
        s.valu = op.startswith('v_') and not s.mfma
        s.trans = op.startswith(TRANS)
        s.salu = op.startswith('s_')
        s.ds = op.startswith('ds_')
        s.vmem = op.startswith(('buffer_', 'global_', 'flat_'))
        s.lds_dma = s.vmem and (' lds' in text or 'load_lds' in op)
        s.w = set(); s.r = set()
        s.dpp = 'row_' in text or 'quad_perm' in text or 'wave_' in text or '_dpp' in op
        s.passes = 0
        s.A = s.B = s.C = set()
        if op.startswith('v_smfmac'):
            s.w = regs_of(ops[0]); s.A = regs_of(ops[1]); s.B = regs_of(ops[2]) | regs_of(ops[3].split()[0]); s.C = regs_of(ops[0])
            s.r = s.A | s.B | s.C
            assert '16x16x64' in op or '32x32x32' in op
            s.passes = 4 if '16x16x64' in op else 8
        elif s.mfma:
            s.w = regs_of(ops[0]); s.A = regs_of(ops[1]); s.B = regs_of(ops[2]); s.C = regs_of(ops[3])
            s.r = s.A | s.B | s.C
            s.passes = 8 if '32x32x16' in op else 4 if '16x16x32' in op else 16
        elif s.valu:
            if op.startswith('v_permlane') and 'swap' in op:
                s.w = regs_of(ops[0]) | regs_of(ops[1]); s.r = set(s.w)
            elif op.startswith('v_cmpx'):
                s.w = regs_of(ops[0]) | {'exec'}; s.r = set().union(*[regs_of(o) for o in ops[1:]])
            elif op.startswith(('v_add_co', 'v_sub_co', 'v_addc_co', 'v_subb_co', 'v_subrev_co')):
                s.w = regs_of(ops[0]) | regs_of(ops[1]); s.r = set().union(*[regs_of(o) for o in ops[2:]])
            elif op.startswith('v_nop'):
                pass
            else:
                s.w = regs_of(ops[0]); s.r = set().union(set(), *[regs_of(o) for o in ops[1:]])
                if op.startswith(('v_fmac', 'v_dot2c', 'v_pk_fmac', 'v_writelane', 'v_mac')) or s.dpp: s.r |= s.w
                if op.startswith('v_cndmask') and len(ops) == 3: s.r.add('vcc')
        elif s.ds:
            if op.startswith(('ds_read', 'ds_bpermute', 'ds_permute', 'ds_swizzle')):
                s.w = regs_of(ops[0]); s.r = set().union(set(), *[regs_of(o) for o in ops[1:]])
            else:
                s.r = set().union(set(), *[regs_of(o) for o in ops])
        elif s.vmem:
            if 'load' in op and not s.lds_dma or ('atomic' in op and ' sc0' in text):
                s.w = regs_of(ops[0]); s.r = set().union(set(), *[regs_of(o) for o in ops[1:]])
                if 'atomic' in op: s.r |= s.w
            else:
                s.r = set().union(set(), *[regs_of(o) for o in ops])
            if s.lds_dma: s.r.add('m0')
        elif s.salu:
            if op.startswith(('s_cmp', 's_waitcnt', 's_nop', 's_barrier', 's_branch', 's_cbranch', 's_endpgm', 's_setprio', 's_sleep', 's_bitcmp')):
                s.r = set().union(set(), *[regs_of(o) for o in ops])
            else:
                s.w = regs_of(ops[0]) if ops else set(); s.r = set().union(set(), *[regs_of(o) for o in ops[1:]])
                if 'saveexec' in op: s.w.add('exec')
        s.ws = 1
        if op == 's_nop': s.ws = int(ops[0], 0) + 1
        s.wide_store = s.vmem and 'store' in op and ('x4' in op or 'x3' in op)
        if s.wide_store:
            s.data = regs_of(ops[0]) if op.startswith('buffer_') else regs_of(ops[1])
def isv(r): return r[0] in 'va' and r not in ('vcc',)
def need(p, c):
    n = 0; why = ''
    def upd(k, w):
        nonlocal n, why
        if k > n: n, why = k, w
    pv = {r for r in p.w if isv(r)}
    ps = {r for r in p.w if not isv(r)}
    if p.valu:
        if c.mfma and pv & c.r: upd(2, 'VALU->MFMA operand')
        if c.op.startswith('v_permlane') and pv & c.r: upd(2, 'VALU->permlane')
        if c.dpp and c.valu and pv & c.r: upd(2, 'VALU->DPP')
        if c.op.startswith(('v_readlane', 'v_readfirstlane')) and pv & c.r: upd(1, 'VALU->readlane')
        if p.trans and c.valu and not c.trans and pv & c.r: upd(1, 'trans->VALU')
        if p.trans and c.valu and c.trans and pv & c.r: upd(1, 'trans->trans (conservative)')
        if ps:
            sp = ps - {'exec'}
            if c.vmem and sp & c.r: upd(5, 'VALU sgpr->VMEM')
            if c.valu and sp & c.r: upd(2, 'VALU sgpr->VALU const')
            if c.op.startswith(('v_readlane', 'v_writelane')) and sp & c.r: upd(4, 'VALU sgpr->lane select')
            if c.salu and sp & c.r and not c.op.startswith('s_waitcnt'): upd(1, 'VALU sgpr->SALU (conservative)')
            if 'exec' in ps:
                if c.mfma: upd(4, 'VALU exec->MFMA')
                if c.dpp: upd(5, 'VALU exec->DPP')
                if c.op.startswith(('v_permlane', 'v_readlane', 'v_readfirstlane', 'v_writelane')): upd(4, 'cmpx->permlane/readlane')
        if 'op_sel' in p.text and c.valu and pv & c.r and not p.op.startswith('v_pk_'): upd(1, 'opsel->VALU')
    if p.mfma:
        ps_ = p.passes
        t_valu = {2: 5, 4: 8, 8: 12, 16: 20}[ps_]
        t_part = {2: 4, 4: 6, 8: 10, 16: 18}[ps_]
        if c.mfma:
            if pv & (c.A | c.B): upd(t_valu, 'MFMA D->MFMA A/B')
            if pv & c.C:
                if not (c.C == p.w and c.passes == p.passes): upd(t_part, 'MFMA D->MFMA C partial/other shape')
            if pv & c.w and not (pv & c.C):
                upd(t_part, 'MFMA D->MFMA D WAW (conservative)')
        elif (c.valu or c.vmem or c.ds) and pv & (c.r | c.w): upd(t_valu, 'MFMA D->VALU/mem')
        if c.valu and (p.C & c.w) and not (pv & c.w): upd({2: 1, 4: 3, 8: 7, 16: 15}[ps_], 'MFMA C WAR')
    if p.salu and 'm0' in p.w and (c.lds_dma or c.op.startswith('s_sendmsg')): upd(1, 'm0->DMA')
    if p.vmem and getattr(p, 'wide_store', False):
        if c.valu and p.data & c.w: upd(2, 'wide store WAR')
        elif (c.ds or c.vmem) and p.data & c.w: upd(1, 'wide store WAR (mem)')
    return n, why
def parse(text):
    ins = []; labels = {}
    for ln, l in enumerate(text.split('\n'), 1):
        l = l.split(';')[0].split('//')[0].strip()
        if not l or l.startswith('.'): continue
        m = re.match(r'^([A-Za-z_][\w.$]*):\s*(.*)$', l)
        if m:
            labels[m.group(1)] = len(ins)
            l = m.group(2).strip()
            if not l: continue
        ins.append(I(l, ln))
    return ins, labels
def check(text, maxws=21, verbose=True):
    ins, labels = parse(text)
    n = len(ins)
    def succ(i):
        x = ins[i]
        if x.op == 's_endpgm': return []
        if x.op == 's_branch': return [labels[x.ops[0]]]
        if x.op.startswith('s_cbranch'): return [labels[x.ops[0]], i + 1]
        return [i + 1] if i + 1 < n else []
    probs = []
    for i, p in enumerate(ins):
        if not (p.valu or p.mfma or (p.salu and 'm0' in p.w) or getattr(p, 'wide_store', False)): continue
        seen = {}
        st = [(j, 0) for j in succ(i)]
        while st:
            j, ws = st.pop()
            if ws >= maxws: continue
            if j in seen and seen[j] <= ws: continue
            seen[j] = ws
            c = ins[j]
            k, why = need(p, c)
            if k > ws: probs.append((p, c, k, ws, why))
            for s in succ(j): st.append((s, ws + c.ws))
    if verbose:
        for p, c, k, ws, why in probs[:60]:
            print(f'HAZARD {why}: need {k} have {ws}\n   L{p.ln}: {p.text}\n   L{c.ln}: {c.text}')
        print(f'{len(probs)} hazards')
    return probs
if __name__ == '__main__':
    check(open(sys.argv[1]).read())
```

```python
from common import *
import common

OPT = {}
XBUF = 0; XSZ = 32768; XRING = 3*XSZ
WBUF = XRING; WH = 12288; WRING = 5*WH
WPHI = WBUF + WRING
K1_LDS = WPHI + 4096

def accQ(db, tb): return 0 + (db*4 + tb)*4
def accK(db, tb): return 32 + (db*4 + tb)*4
def accV(tb, db): return 64 + (tb*2 + db)*4
def fX(st, tb): return 96 + st*40 + tb*4
def fW(st, seg, db): return 96 + st*40 + 16 + (seg*2 + db)*4
VXD = 176; VWD = 180; VXR = 181; VWR = 183; VLANE = 185; VST = 186; VSTK = 187
VXB = 214; VWB = 215

def ring(s, inc, size, t='s34'):
    return [f's_add_u32 s{s}, s{s}, {inc}', f's_sub_u32 {t}, s{s}, {size}', f's_min_u32 s{s}, s{s}, {t}']

def dma_w(k):
    return [[f's_add_u32 m0, s{31+k}, {WBUF}'], [f'buffer_load_dwordx4 v{VWD}, s[8:11], s{27+k} offen lds', f's_add_u32 s{27+k}, s{27+k}, 393216'],
            ring(31+k, 2*WH, WRING)]
def dma_x(i):
    r = [[f's_add_u32 m0, s30, {XBUF + i*1024}'], [f'buffer_load_dwordx4 v{VXD+i}, s[4:7], s26 offen lds']]
    if i == 3: r.append(['s_add_u32 s26, s26, 128'] + ring(30, XSZ, XRING))
    return r

def pf_w():
    return ['buffer_load_dword v213, v212, s[8:11], s64 offen', 's_add_u32 s64, s64, 393216', 's_min_u32 s64, s64, s65']
def read_items(st, kh):
    it = []
    def rx(tb): return [f'ds_read_b128 {vr(fX(st,tb))}, v{VXR+kh} offset:{tb*2048}']
    def rw(seg, db, jj):
        r = fW(st, seg, db) + 2*jj
        return [f'ds_read_b64_tr_b16 {vr(r,2)}, v{VWR+db} offset:{seg*1024 + jj*512}']
    it += [rx(0), rw(0,0,0), rw(0,0,1), rx(1), rx(2), rx(3)]
    for seg, db in [(0,1),(1,0),(1,1),(2,0),(2,1)]:
        it += [rw(seg,db,0), rw(seg,db,1)]
    return it
def read_addr(kh):
    r = [f'v_add_u32 v{VWR}, s68, v{VWB}', f'v_xor_b32 v{VWR+1}, 128, v{VWR}'] + ring(68, WH, WRING, 's35')
    if kh == 0:
        r += [f'v_add_u32 v{VXR}, s69, v{VXB}', f'v_xor_b32 v{VXR+1}, 64, v{VXR}'] + ring(69, XSZ, XRING, 's35')
    return r

def mfmas(st):
    m = []
    for seg in range(3):
        for db in range(2):
            for tb in range(4):
                if seg < 2:
                    d = accQ(db,tb) if seg == 0 else accK(db,tb)
                    m.append(f'v_mfma_f32_16x16x32_bf16 {vr(d)}, {vr(fW(st,seg,db))}, {vr(fX(st,tb))}, {vr(d)}')
                else:
                    d = accV(tb,db)
                    m.append(f'v_mfma_f32_16x16x32_bf16 {vr(d)}, {vr(fX(st,tb))}, {vr(fW(st,seg,db))}, {vr(d)}')
    return m

def place(m, items):
    out = []
    by = {}
    for sl, l in items: by.setdefault(sl, []).append(l)
    for i, x in enumerate(m):
        out.append(x)
        for l in by.get(i, []): out += l
    return out

def step(a, cur, reads=True, extra=(), mf=True):
    nxt = cur ^ 1; kh = 0 if cur == 1 else 1
    m = mfmas(cur) if mf else []
    it = []
    if reads and not OPT.get('noreads'):
        for x in read_addr(kh): a(x)
        rd = read_items(nxt, kh)
        for i, r in enumerate(rd): it.append((i + OPT.get('rd0', 0), r))
    it += list(extra)
    if mf:
        for x in place(m, it): a(x)
    else:
        for sl, l in sorted(it, key=lambda t: t[0]):
            for x in l: a(x)
            if 'm0' in l[0]: a('s_nop 0')

def stage_dma(level):
    if OPT.get('nodma'): level = 0
    A = []; B = []
    if level >= 1:
        w0 = dma_w(0); A += [(0, w0[0]), (1, w0[1]), (2, w0[2])]
    if level == 2:
        w1 = dma_w(1); w2 = dma_w(2)
        A += [(2, w1[0]), (3, w1[1]), (4, w1[2]), (5, w2[0]), (6, w2[1]), (7, w2[2])]
        xs = OPT.get('xslots', [(0, 12), (0, 18), (1, 4), (1, 12)])
        for i in range(4):
            d = dma_x(i); stp, sl = xs[i]
            tgt = A if stp == 0 else B
            tgt += [(sl, d[0]), (sl + 1, d[1])]
            if i == 3: tgt += [(sl + 2, d[2])]
        if OPT.get('pfw'): B += [(OPT.get('pfslot', 16), pf_w())]
    return A, B

def stage(a, level, vm, first=False):
    a(f's_waitcnt vmcnt({vm}) lgkmcnt(0)')
    if first and OPT.get('fused'):
        a('s_cmp_eq_u32 s94, 1'); a('s_cbranch_scc0 K1_nordy')
        a('s_waitcnt vmcnt(0)'); a('v_mov_b32 v244, 1'); a('s_mov_b64 exec, 1')
        a('buffer_store_dword v244, off, s[52:55], 0 sc1'); a('s_mov_b64 exec, -1')
        a('K1_nordy:')
    if first or not OPT.get('nobar'): a('s_barrier')
    if level == 1 and OPT.get('fused'): a('buffer_load_dword v239, off, s[52:55], 0 sc1')
    if first: stamp(a, 1)
    if OPT.get('trace'):
        a('s_memrealtime s[92:93]'); a('s_waitcnt lgkmcnt(0)'); a('v_mov_b32 v243, s92'); a(f'v_cmp_eq_u32 vcc, s94, v{VLANE}'); a('s_nop 1'); a('v_cndmask_b32 v241, v241, v243, vcc'); a('s_add_u32 s94, s94, 1')
    A, B = stage_dma(level)
    if level == 1:
        w1 = dma_w(1)
        step(a, 1, extra=A)
        lab = a.label('K1_sk')
        a('s_cmp_ge_u32 s20, 4'); a(f's_cbranch_scc1 {lab}')
        for x in w1[0]: a(x)
        a('s_nop 0')
        for x in w1[1]: a(x)
        a(f'{lab}:')
    else:
        step(a, 1, extra=A, mf=not first)
    a('s_waitcnt lgkmcnt(0)')
    step(a, 0, extra=B)

def gen_k1(a, name):
    fused = OPT.get('fused')
    kernel_begin(a, name)
    a('s_cmp_ge_u32 s2, 256'); a('s_cbranch_scc1 ' + ('K2_end' if fused else 'K1_end'))
    stamp(a, 0)
    if fused and common.STAMP:
        for r in (86, 87, 88, 89, 92, 93): a(f's_mov_b32 s{r}, 0')
    if fused:
        a('s_load_dwordx2 s[42:43], s[0:1], 24'); a('s_load_dwordx2 s[44:45], s[0:1], 48'); a('s_load_dwordx4 s[96:99], s[0:1], 64')
    a('s_load_dwordx4 s[36:39], s[0:1], 0')
    a('s_load_dwordx2 s[40:41], s[0:1], 16')
    a('s_load_dwordx2 s[46:47], s[0:1], 40')
    a('s_load_dwordx2 s[48:49], s[0:1], 56')
    a('s_load_dwordx2 s[50:51], s[0:1], 80')
    a('s_and_b32 s3, s2, 7'); a('s_lshr_b32 s91, s2, 3')
    if OPT.get('rolemap'):
        a('s_and_b32 s23, s91, 1'); a('s_lshl_b32 s22, s3, 1'); a('s_bfe_u32 s34, s91, 0x10001'); a('s_add_u32 s22, s22, s34')
    else:
        a('s_lshr_b32 s23, s3, 2')
        a('s_and_b32 s22, s3, 3'); a('s_lshl_b32 s22, s22, 2'); a('s_and_b32 s34, s91, 3')
        if OPT.get('hpx'): a(f's_xor_b32 s34, s34, {OPT["hpx"]}')
        a('s_add_u32 s22, s22, s34')
        if OPT.get('hpx2'): a(f's_xor_b32 s22, s22, {OPT["hpx2"]}')
    a('s_lshr_b32 s21, s91, 2')
    a('v_lshrrev_b32 v1, 6, v0')
    a(f'v_and_b32 v{VLANE}, 63, v0')
    a('v_readfirstlane_b32 s20, v1')
    L = VLANE
    a(f'v_lshrrev_b32 v2, 3, v{L}'); a(f'v_and_b32 v3, 7, v{L}'); a(f'v_lshrrev_b32 v4, 4, v{L}'); a(f'v_and_b32 v5, 15, v{L}')
    a('s_and_b32 s24, s20, 3'); a('s_lshr_b32 s25, s20, 2')
    a('v_xor_b32 v6, v3, v4'); a('v_lshlrev_b32 v6, 4, v6'); a(f'v_lshl_add_u32 v{VXD}, v2, 11, v6')
    a(f'v_xor_b32 v6, 64, v6'); a(f'v_lshl_add_u32 v6, v2, 11, v6')
    a(f'v_add_u32 v{VXD+1}, 16384, v6'); a(f'v_add_u32 v{VXD+2}, 32768, v{VXD}'); a(f'v_add_u32 v{VXD+3}, 49152, v6')
    a(f'v_lshrrev_b32 v6, 5, v{L}'); a('v_lshlrev_b32 v6, 2, v6'); a(f'v_bfe_u32 v7, v{L}, 1, 2'); a('v_add_u32 v6, v6, v7')
    a('v_mul_u32_u24 v6, 6144, v6')
    a('s_and_b32 s34, s20, 1')
    a('v_and_b32 v7, 3, v2'); a('v_xor_b32 v7, s34, v7'); a('v_lshlrev_b32 v7, 5, v7')
    a(f'v_and_b32 v8, 1, v{L}'); a('v_lshlrev_b32 v8, 4, v8')
    a(f'v_add3_u32 v{VWD}, v6, v7, v8')
    a('v_lshrrev_b32 v6, 1, v5'); a('v_xor_b32 v6, v6, v4'); a('v_lshlrev_b32 v6, 4, v6')
    a('v_lshl_add_u32 v6, v5, 7, v6'); a('s_lshl_b32 s34, s24, 13'); a(f'v_add_u32 v{VXB}, s34, v6')
    a('v_mul_u32_u24 v6, 3072, v4'); a('v_and_b32 v7, 1, v4'); a('s_lshl_b32 s34, s25, 1'); a('v_xor_b32 v7, s34, v7')
    a('v_lshl_add_u32 v6, v7, 7, v6'); a(f'v_bfe_u32 v7, v{L}, 2, 2'); a('v_lshl_add_u32 v6, v7, 5, v6')
    a(f'v_and_b32 v7, 3, v{L}'); a('v_lshl_add_u32 v6, v7, 3, v6'); a(f'v_add_u32 v{VWB}, {WBUF}, v6')
    a('v_lshrrev_b32 v6, 1, v4'); a('v_lshlrev_b32 v6, 10, v6'); a('v_and_b32 v7, 1, v4'); a('v_lshl_add_u32 v6, v7, 9, v6')
    a(f'v_lshl_add_u32 v{VST}, v5, 4, v6')
    a('v_lshrrev_b32 v7, 3, v5'); a('v_lshl_add_u32 v6, v7, 8, v6'); a('v_and_b32 v7, 7, v5'); a(f'v_lshl_add_u32 v{VSTK}, v7, 4, v6')
    a('s_lshl_b32 s26, s21, 8'); a('s_lshl_b32 s34, s20, 5'); a('s_add_u32 s26, s26, s34'); a('s_lshl_b32 s26, s26, 11')
    a('s_lshl_b32 s30, s20, 12')
    a(f's_mul_i32 s35, s24, {8*6144}'); a('s_lshl_b32 s34, s22, 7'); a('s_add_u32 s35, s35, s34')
    a('s_lshl_b32 s34, s25, 12')
    a('s_add_u32 s27, s35, s34'); a(f's_add_u32 s29, s27, {2*196608}'); a(f's_add_u32 s27, s27, {196608}')
    a(f's_mul_i32 s34, s25, {196608}'); a('s_add_u32 s28, s35, s34'); a(f's_add_u32 s28, s28, {196608 + 2048}')
    a('s_mul_i32 s35, s24, 3072'); a('s_lshl_b32 s34, s25, 11')
    a('s_add_u32 s31, s35, s34'); a(f's_add_u32 s33, s31, {2*WH}'); a(f's_add_u32 s31, s31, {WH}')
    a(f's_mul_i32 s34, s25, {WH}'); a('s_add_u32 s32, s35, s34'); a(f's_add_u32 s32, s32, {WH + 1024}')
    a('s_mov_b32 s68, 0'); a('s_mov_b32 s69, 0')
    if OPT.get('trace'): a('s_mov_b32 s94, 0'); a('v_mov_b32 v241, 0')
    a('s_waitcnt lgkmcnt(0)')
    a('s_cmp_eq_u32 s23, 0')
    a('s_mov_b32 s4, s36'); a('s_mov_b32 s5, s37'); a('s_mov_b32 s6, 4194304'); a('s_mov_b32 s7, 0x20000')
    a('s_cselect_b32 s8, s38, s46'); a('s_cselect_b32 s9, s39, s47'); a('s_mov_b32 s10, 6291456'); a('s_mov_b32 s11, 0x20000')
    srd(a, 12, 50, 51, ws_size())
    if fused:
        a(f's_cmp_eq_u32 s2, {8 if OPT.get("rolemap") else 4}'); a('s_cselect_b32 s94, 1, 0'); a('s_cmp_eq_u32 s20, 0'); a('s_cselect_b32 s94, s94, 0')
        a('s_cmp_eq_u32 s94, 1'); a('s_cbranch_scc0 K1_noclr')
        for r in range(4): a(f'v_mov_b32 v{244+r}, 0')
        a(f'v_lshlrev_b32 v243, 4, v{L}'); a(f's_mov_b32 s34, {WS_FL}'); a(f's_mov_b32 s35, {WS_FL + 4096}')
        for i in range(4): a(f'buffer_store_dwordx4 v[244:247], v243, s[12:15], s34 offen offset:{i*1024} sc1')
        for i in range(2): a(f'buffer_store_dwordx4 v[244:247], v243, s[12:15], s35 offen offset:{i*1024} sc1')
        a('K1_noclr:')
        a('s_cmp_eq_u32 s23, 0'); a(f's_mov_b32 s95, {FL_1B}'); a(f's_cselect_b32 s95, {FL_1A}, s95')
        a('s_lshl_b32 s34, s22, 7'); a('s_add_u32 s95, s95, s34'); a('s_lshl_b32 s34, s21, 2'); a('s_add_u32 s95, s95, s34')
    if OPT.get('clr'):
        a('s_or_b32 s34, s2, s20'); a('s_cmp_eq_u32 s34, 0'); a('s_cbranch_scc0 K1_noclr')
        for r in range(4): a(f'v_mov_b32 v{244+r}, 0')
        a(f'v_lshlrev_b32 v243, 4, v{L}'); a(f's_mov_b32 s34, {WS_FL}')
        a('buffer_store_dwordx4 v[244:247], v243, s[12:15], s34 offen sc1'); a('buffer_store_dwordx4 v[244:247], v243, s[12:15], s34 offen offset:1024 sc1')
        a('K1_noclr:')
    a('s_sub_u32 s35, s27, 196608'); a(f's_add_u32 m0, s31, {WBUF - WH}'); a('s_nop 0')
    a(f'buffer_load_dwordx4 v{VWD}, s[8:11], s35 offen lds')
    a('s_cmp_ge_u32 s20, 4'); a('s_cbranch_scc1 K1_pro0')
    a('s_sub_u32 s35, s28, 196608'); a(f's_add_u32 m0, s32, {WBUF - WH}'); a('s_nop 0')
    a(f'buffer_load_dwordx4 v{VWD}, s[8:11], s35 offen lds')
    a('K1_pro0:')
    def dma_x_all():
        for i in range(4):
            d = dma_x(i)
            for x in d[0]: a(x)
            a('s_nop 0')
            for l in d[1:]:
                for x in l: a(x)
    dma_x_all()
    a('s_cmp_eq_u32 s23, 0'); a('s_cbranch_scc0 K1_proB')
    srd(a, 16, 40, 41, 65536)
    a('s_and_b32 s34, s20, 3'); a('s_lshl_b32 s34, s34, 10'); a(f's_add_u32 m0, s34, {WPHI}')
    a('s_lshl_b32 s35, s22, 12'); a('s_add_u32 s35, s35, s34'); a(f'v_lshlrev_b32 v6, 4, v{L}')
    a('buffer_load_dwordx4 v6, s[16:19], s35 offen lds')
    a('s_branch K1_proJ')
    a('K1_proB:')
    srd(a, 16, 36, 37, 4194304); srd(a, 52, 48, 49, 2048)
    if fused:
        a('s_lshl_b32 s34, s21, 4'); a('s_add_u32 s34, s34, s22'); a('s_lshl_b32 s34, s34, 3'); a('s_add_u32 s34, s34, s20')
    else:
        a('s_and_b32 s34, s3, 3'); a('s_lshl_b32 s34, s34, 5'); a('s_add_u32 s34, s34, s91'); a('s_lshl_b32 s34, s34, 3'); a('s_add_u32 s34, s34, s20')
    a('s_lshl_b32 s56, s34, 1')
    a('s_lshl_b32 s35, s56, 11')
    a(f'v_lshlrev_b32 v6, 5, v{L}')
    a('buffer_load_dwordx4 v[188:191], v6, s[16:19], s35 offen'); a('buffer_load_dwordx4 v[192:195], v6, s[16:19], s35 offen offset:16')
    a('buffer_load_dwordx4 v[196:199], v6, s[16:19], s35 offen offset:2048'); a('buffer_load_dwordx4 v[200:203], v6, s[16:19], s35 offen offset:2064')
    a('buffer_load_dwordx4 v[204:207], v6, s[52:55], 0 offen'); a('buffer_load_dwordx4 v[208:211], v6, s[52:55], 0 offen offset:16')
    a('K1_proJ:')
    for k in range(3):
        d = dma_w(k)
        for x in d[0]: a(x)
        a('s_nop 0')
        for l in d[1:]:
            for x in l: a(x)
    dma_x_all()
    if fused: srd(a, 52, 98, 99, 256)
    if OPT.get('pfw'):
        Lp = OPT['pfw']
        a('s_lshl_b32 s34, s21, 3'); a('s_add_u32 s34, s34, s20'); a('s_mul_i32 s64, s34, 6144'); a('s_lshl_b32 s34, s22, 7'); a('s_add_u32 s64, s64, s34')
        a(f's_add_u32 s65, s64, {15*393216}'); a(f's_add_u32 s64, s64, {(Lp-1)*393216}')
        if OPT.get('pfseg') is None: a(f'v_min_u32 v212, 2, v{VLANE}'); a('v_lshlrev_b32 v212, 11, v212')
        elif OPT['pfseg'] == 12: a(f'v_min_u32 v212, 1, v{VLANE}'); a('v_lshlrev_b32 v212, 11, v212'); a('v_add_u32 v212, 2048, v212')
        else: a(f'v_mov_b32 v212, {2048*OPT["pfseg"]}')
        for x in pf_w(): a(x)
    for r in range(96): a(f'v_mov_b32 v{r}, 0')
    stamp(a, 1) if OPT.get('st1early') else None
    vm = 6 if OPT.get('pfw') else 5
    stage(a, 2, vm, first=True)
    a('s_mov_b32 s90, 13')
    a('K1_loop:')
    stage(a, 2, vm)
    a('s_sub_u32 s90, s90, 1'); a('s_cmp_lg_u32 s90, 0'); a('s_cbranch_scc1 K1_loop')
    stage(a, 1, vm)
    stage(a, 0, 0)
    a('s_waitcnt lgkmcnt(0)')
    step(a, 1, reads=False)
    if OPT.get('trace'):
        a('s_memrealtime s[92:93]'); a('s_waitcnt lgkmcnt(0)'); a('v_mov_b32 v243, s92'); a(f'v_cmp_eq_u32 vcc, s94, v{VLANE}'); a('s_nop 1'); a('v_cndmask_b32 v241, v241, v243, vcc')
        a('s_lshl_b32 s92, s2, 3'); a('s_add_u32 s92, s92, s20'); a('s_lshl_b32 s92, s92, 8'); a(f's_add_u32 s92, s92, {WS_STAMP + 4*131072}')
        a(f'v_lshlrev_b32 v242, 2, v{VLANE}'); a('buffer_store_dword v241, v242, s[12:15], s92 offen')
    stamp(a, 2)
    if fused:
        a('v_cmp_ne_u32 vcc, 1, v239'); a('s_nop 1'); a('s_cbranch_vccnz K1_spinR'); a('K1_spinR_b:')
    a('s_lshl_b32 s57, s22, 1'); a('s_add_u32 s57, s57, s25')
    a('s_lshl_b32 s58, s21, 3'); a('s_lshl_b32 s34, s24, 1'); a('s_add_u32 s58, s58, s34')
    a('s_lshl_b32 s59, s57, 17'); a('s_lshl_b32 s34, s58, 11'); a('s_add_u32 s59, s59, s34')
    a('s_cmp_eq_u32 s23, 0'); a('s_cbranch_scc1 K1_epiA')
    epi_B(a)
    a('s_branch K1_fin')
    a('K1_epiA:')
    epi_A(a)
    a('K1_fin:')
    stamp(a, 3)
    if fused: return
    a('s_waitcnt vmcnt(0)')
    stamp(a, 4)
    stamp_flush(a, 5, 0, 12, 20, 240)
    a('K1_end:')
    a('s_endpgm')

def pack_qk(acc, T):
    out = []
    for tb in range(4):
        for db in range(2):
            r = acc(db, tb)
            out.append(f'v_cvt_pk_bf16_f32 v{T+tb*4+db*2}, v{r}, v{r+1}')
            out.append(f'v_cvt_pk_bf16_f32 v{T+tb*4+db*2+1}, v{r+2}, v{r+3}')
    return out
def pack_v(T):
    out = []
    for b in range(2):
        for db in range(2):
            for tl in range(2):
                r = accV(2*b+tl, db)
                out.append(f'v_cvt_pk_bf16_f32 v{T+(b*2+db)*4+tl*2}, v{r}, v{r+1}')
                out.append(f'v_cvt_pk_bf16_f32 v{T+(b*2+db)*4+tl*2+1}, v{r+2}, v{r+3}')
    return out

def SC(): return ' sc1' if OPT.get('fused') else ''
def epi_B(a):
    c = 32**-0.5 * LOG2E
    a(f's_mov_b32 s60, {fhex(c)}'); a(f's_mov_b32 s61, {fhex(c)}')
    a(f's_add_u32 s62, s59, {WS_QB}')
    a('s_lshl_b32 s63, s57, 18'); a('s_lshl_b32 s34, s58, 12'); a('s_add_u32 s63, s63, s34')
    a(f's_add_u32 s63, s63, {WS_KVB}'); a('s_add_u32 s64, s63, 4096')
    a('s_nop 1')
    for x in pack_qk(accK, 112): a(x)
    for tb in range(4):
        a(f'buffer_store_dwordx4 {vr(112+tb*4)}, v{VSTK}, s[12:15], s{63+(tb>>1)} offen offset:{(tb&1)*128}{SC()}')
    for r in range(0, 32, 2): a(f'v_pk_mul_f32 {vr(r,2)}, {vr(r,2)}, s[60:61]')
    for x in pack_qk(accQ, 96): a(x)
    for tb in range(4):
        a(f'buffer_store_dwordx4 {vr(96+tb*4)}, v{VST}, s[12:15], s62 offen offset:{(tb>>1)*2048+(tb&1)*256}{SC()}')
    for x in pack_v(128): a(x)
    for b in range(2):
        for db in range(2):
            a(f'buffer_store_dwordx4 {vr(128+(b*2+db)*4)}, v{VST}, s[12:15], s{63+b} offen offset:{2048+db*256}{SC()}')
    a('s_mov_b32 s34, 0xffff0000')
    a('v_mov_b32 v0, 0'); a('v_mov_b32 v1, 0')
    for i in range(8):
        a(f'v_lshlrev_b32 v2, 16, v{204+i}'); a(f'v_and_b32 v3, s34, v{204+i}')
        for t in range(2):
            x = 188 + 8*t + i
            a(f'v_lshlrev_b32 v4, 16, v{x}'); a(f'v_and_b32 v5, s34, v{x}')
            a(f'v_fmac_f32 v{t}, v2, v4'); a(f'v_fmac_f32 v{t}, v3, v5')
    for sh in ['row_shr:1', 'row_shr:2', 'row_shr:4', 'row_shr:8']:
        a('s_nop 1')
        for t in range(2): a(f'v_add_f32_dpp v{t}, v{t}, v{t} {sh} row_mask:0xf bank_mask:0xf bound_ctrl:0')
    a('s_nop 1')
    for t in range(2): a(f'v_add_f32_dpp v{t}, v{t}, v{t} row_bcast:15 row_mask:0xa bank_mask:0xf')
    a('s_nop 1')
    for t in range(2): a(f'v_add_f32_dpp v{t}, v{t}, v{t} row_bcast:31 row_mask:0xc bank_mask:0xf')
    a(f's_mov_b32 s34, {fhex(-LOG2E)}')
    for t in range(2): a(f'v_mul_f32 v{t}, s34, v{t}')
    for t in range(2): a(f'v_exp_f32 v{t}, v{t}')
    a('s_nop 0')
    for t in range(2): a(f'v_add_f32 v{t}, 1.0, v{t}')
    for t in range(2): a(f'v_rcp_f32 v{t}, v{t}')
    a(f'v_cmp_eq_u32 vcc, 63, v{VLANE}')
    a('v_mov_b32 v2, 0x7ffff000')
    if OPT.get('fused'):
        a('s_lshl_b32 s34, s21, 4'); a('s_add_u32 s34, s34, s22'); a('s_lshl_b32 s34, s34, 4'); a('s_add_u32 s34, s34, s20'); a('s_lshl_b32 s34, s34, 3')
    else: a('s_lshl_b32 s34, s56, 2')
    a(f's_add_u32 s34, s34, {WS_G}')
    a('v_cndmask_b32 v2, v2, 0, vcc') if False else None
    a('v_mov_b32 v3, 0')
    a('v_cndmask_b32 v2, v2, v3, vcc')
    a(f'buffer_store_dwordx2 v[0:1], v2, s[12:15], s34 offen{SC()}')

def epi_A(a):
    QP, KP, VP = 96, 112, 128
    WF = 144; ONES = 152; ID = 156
    L = VLANE
    a(f'v_lshrrev_b32 v162, 4, v{L}'); a(f'v_bfe_u32 v163, v{L}, 2, 2'); a('v_lshl_add_u32 v163, v162, 2, v163')
    a(f'v_and_b32 v164, 3, v{L}'); a('v_lshlrev_b32 v164, 3, v164'); a('v_lshl_add_u32 v163, v163, 6, v164')
    a('s_lshl_b32 s34, s25, 11'); a(f's_add_u32 s34, s34, {WPHI}'); a('v_add_u32 v163, s34, v163')
    for fb in range(2):
        for jj in range(2):
            a(f'ds_read_b64_tr_b16 {vr(WF+fb*4+jj*2,2)}, v163 offset:{fb*32+jj*1024}')
    a(f's_add_u32 s62, s59, {WS_QA}')
    for x in pack_qk(accK, KP): a(x)
    for x in pack_qk(accQ, QP): a(x)
    for tb in range(4):
        a(f'buffer_store_dwordx4 {vr(QP+tb*4)}, v{VST}, s[12:15], s62 offen offset:{(tb>>1)*2048+(tb&1)*256}{SC()}')
    for x in pack_v(VP): a(x)
    for r in range(4): a(f'v_mov_b32 v{ONES+r}, 0x3f803f80')
    a(f'v_and_b32 v164, 15, v{L}'); a('v_lshlrev_b32 v165, 2, v162'); a('v_sub_u32 v164, v164, v165')
    a('v_and_b32 v165, 1, v164'); a('v_lshlrev_b32 v165, 4, v165'); a('v_mov_b32 v166, 0x3f80'); a('v_lshlrev_b32 v165, v165, v166')
    a('v_lshrrev_b32 v164, 1, v164'); a('v_mov_b32 v166, 0')
    a('v_cmp_eq_u32 vcc, 0, v164'); a(f'v_mov_b32 v{ID}, 0'); a(f'v_mov_b32 v{ID+1}, 0')
    a(f'v_cndmask_b32 v{ID+2}, v166, v165, vcc')
    a('v_cmp_eq_u32 vcc, 1, v164'); a(f'v_mov_b32 v{ID+4}, 0'); a(f'v_mov_b32 v{ID+5}, 0')
    a(f'v_cndmask_b32 v{ID+3}, v166, v165, vcc')
    a('s_waitcnt lgkmcnt(0)')
    def P(tb, fb): return tb*8 + fb*4
    for tb in range(4):
        for fb in range(2):
            a(f'v_mfma_f32_16x16x32_bf16 {vr(P(tb,fb))}, {vr(WF+fb*4)}, {vr(KP+tb*4)}, 0')
    a(f's_mov_b32 s60, {fhex(LOG2E)}'); a(f's_mov_b32 s61, {fhex(LOG2E)}')
    a(f's_mov_b32 s66, {fhex(-LOG2E)}'); a(f's_mov_b32 s67, {fhex(-LOG2E)}')
    a('s_nop 3')
    MX = 162; NM = 166
    for k in range(4):
        for tb in range(4):
            p = tb*8
            if k == 0:
                a(f'v_max3_f32 v{MX+tb}, v{p}, v{p+1}, v{p+2}'); a(f'v_max3_f32 v{NM+tb}, -v{p}, -v{p+1}, -v{p+2}')
            elif k < 3:
                q = p + 1 + 2*k
                a(f'v_max3_f32 v{MX+tb}, v{MX+tb}, v{q}, v{q+1}'); a(f'v_max3_f32 v{NM+tb}, v{NM+tb}, -v{q}, -v{q+1}')
            else:
                a(f'v_max_f32 v{MX+tb}, v{MX+tb}, v{p+7}'); a(f'v_max_f32_e64 v{NM+tb}, v{NM+tb}, -v{p+7}')
    a('s_nop 1')
    for tb in range(4): a(f'v_permlane32_swap_b32 v{MX+tb}, v{NM+tb}')
    for tb in range(4): a(f'v_max_f32 v{MX+tb}, v{MX+tb}, v{NM+tb}')
    a('s_nop 0')
    a(f'v_permlane16_swap_b32 v{MX}, v{MX+1}'); a(f'v_permlane16_swap_b32 v{MX+2}, v{MX+3}')
    a(f'v_max_f32 v{MX}, v{MX}, v{MX+1}'); a(f'v_max_f32 v{MX+2}, v{MX+2}, v{MX+3}')
    M = lambda tb, sg: 220 + (tb*2 + sg)*2
    a(f'v_mov_b32 v{MX+1}, v{MX}'); a(f'v_mov_b32 v{MX+3}, v{MX+2}'); a('s_nop 0')
    a(f'v_permlane16_swap_b32 v{MX}, v{MX+1}'); a(f'v_permlane16_swap_b32 v{MX+2}, v{MX+3}')
    for tb in range(4): a(f'v_mov_b32 v{NM+tb}, v{MX+tb}')
    a('s_nop 0')
    for tb in range(4): a(f'v_permlane32_swap_b32 v{MX+tb}, v{NM+tb}')
    for tb in range(4):
        a(f'v_mul_f32 v{M(tb,0)}, s66, v{MX+tb}'); a(f'v_mul_f32 v{M(tb,1)}, s66, v{NM+tb}')
    E = lambda tb, sg: 32 + sg*32 + tb*8
    for sg in range(2):
        for tb in range(4):
            for i in range(0, 8, 2):
                cs = 's[60:61]' if sg == 0 else 's[66:67]'
                a(f'v_pk_fma_f32 {vr(E(tb,sg)+i,2)}, {vr(tb*8+i,2)}, {cs}, {vr(M(tb,sg),2)} op_sel_hi:[1,1,0]')
    for sg in range(2):
        for tb in range(4):
            for i in range(8): a(f'v_exp_f32 v{E(tb,sg)+i}, v{E(tb,sg)+i}')
    EP = lambda tb, sg: (sg*4 + tb)*4
    a('s_nop 0')
    for sg in range(2):
        for tb in range(4):
            for i in range(4): a(f'v_cvt_pk_bf16_f32 v{EP(tb,sg)+i}, v{E(tb,sg)+2*i}, v{E(tb,sg)+2*i+1}')
    SM = lambda tb, sg: 188 + (sg*4 + tb)*4
    a('s_nop 0')
    for sg in range(2):
        for tb in range(4):
            a(f'v_mfma_f32_16x16x32_bf16 {vr(SM(tb,sg))}, {vr(ONES)}, {vr(EP(tb,sg))}, 0')
    a('s_nop 0')
    RS = lambda tb, sg: 220 + (tb*2 + sg)*2
    for sg in range(2):
        for tb in range(4):
            if sg == 1 and tb == 3: a('s_nop 6')
            a(f'v_rcp_f32 v{RS(tb,sg)}, v{SM(tb,sg)}')
    a('s_nop 0')
    for sg in range(2):
        for tb in range(4):
            for i in range(0, 8, 2):
                a(f'v_pk_mul_f32 {vr(E(tb,sg)+i,2)}, {vr(E(tb,sg)+i,2)}, {vr(RS(tb,sg),2)} op_sel_hi:[1,0]')
    for sg in range(2):
        for tb in range(4):
            for i in range(4): a(f'v_cvt_pk_bf16_f32 v{EP(tb,sg)+i}, v{E(tb,sg)+2*i}, v{E(tb,sg)+2*i+1}')
    D = lambda tb, sg, fb: 32 + ((tb*2 + sg)*2 + fb)*4
    a('s_nop 0')
    for tb in range(4):
        for sg in range(2):
            for fb in range(2):
                idr = ID + 2 if fb == 0 else ID
                a(f'v_mfma_f32_16x16x32_bf16 {vr(D(tb,sg,fb))}, {vr(EP(tb,sg))}, {vr(idr)}, 0')
    PT = lambda b, sg, fb: ((b*2 + sg)*2 + fb)*4
    for b in range(2):
        if b == 1: a('s_nop 3')
        for sg in range(2):
            for fb in range(2):
                for tl in range(2):
                    d = D(2*b+tl, sg, fb)
                    a(f'v_cvt_pk_bf16_f32 v{PT(b,sg,fb)+2*tl}, v{d}, v{d+1}'); a(f'v_cvt_pk_bf16_f32 v{PT(b,sg,fb)+2*tl+1}, v{d+2}, v{d+3}')
    KV = lambda fbs, db: 188 + (fbs*2 + db)*4
    Z = lambda fbs: 220 + fbs*4
    a('s_nop 0')
    for b in range(2):
        for sg in range(2):
            for fb in range(2):
                fbs = sg*2 + fb
                for db in range(2):
                    d = KV(fbs, db)
                    a(f'v_mfma_f32_16x16x32_bf16 {vr(d)}, {vr(PT(b,sg,fb))}, {vr(VP+(b*2+db)*4)}, {"0" if b == 0 else vr(d)}')
                d = Z(fbs)
                a(f'v_mfma_f32_16x16x32_bf16 {vr(d)}, {vr(PT(b,sg,fb))}, {vr(ONES)}, {"0" if b == 0 else vr(d)}')
    a('s_barrier')
    a(f's_mul_i32 s34, s20, 12288'); a(f'v_lshlrev_b32 v0, 4, v{L}'); a('v_add_u32 v1, s34, v0')
    a('s_nop 4')
    for pi in range(8): a(f'ds_write_b128 v1, {vr(188+pi*4)} offset:{pi*1024}')
    for pi in range(4): a(f'ds_write_b128 v1, {vr(220+pi*4)} offset:{8192+pi*1024}')
    a('s_mul_i32 s34, s25, 49152'); a('s_lshl_b32 s35, s24, 11'); a('s_add_u32 s35, s35, s34'); a('v_add_u32 v2, s35, v0')
    a('s_lshl_b32 s35, s24, 10'); a('s_add_u32 s35, s35, s34'); a('s_add_u32 s35, s35, 8192'); a('v_add_u32 v3, s35, v0')
    a('s_waitcnt lgkmcnt(0)'); a('s_barrier')
    for k in range(3):
        for t in range(4):
            if k < 2: a(f'ds_read_b128 {vr(32+(k*4+t)*4)}, v2 offset:{t*12288+k*1024}')
            else: a(f'ds_read_b128 {vr(32+(k*4+t)*4)}, v3 offset:{t*12288}')
    a('s_lshl_b32 s34, s57, 3'); a('s_add_u32 s34, s34, s21')
    a('s_lshl_b32 s62, s34, 13'); a('s_lshl_b32 s35, s24, 11'); a('s_add_u32 s62, s62, s35'); a(f's_add_u32 s62, s62, {WS_KVP}')
    a('s_lshl_b32 s63, s34, 8'); a('s_lshl_b32 s35, s24, 6'); a('s_add_u32 s63, s63, s35'); a(f's_add_u32 s63, s63, {WS_ZP}')
    a(f'v_and_b32 v4, 15, v{L}'); a('v_cmp_eq_u32 vcc, 0, v4'); a(f'v_lshrrev_b32 v4, 4, v{L}'); a('v_lshlrev_b32 v4, 4, v4')
    a('v_mov_b32 v5, 0x7ffff000'); a('v_cndmask_b32 v4, v5, v4, vcc')
    for k in range(3):
        a(f's_waitcnt lgkmcnt({8-4*k})')
        b = 32 + k*16
        for h2 in range(2):
            a(f'v_pk_add_f32 {vr(b+2*h2,2)}, {vr(b+2*h2,2)}, {vr(b+4+2*h2,2)}')
            a(f'v_pk_add_f32 {vr(b+8+2*h2,2)}, {vr(b+8+2*h2,2)}, {vr(b+12+2*h2,2)}')
        for h2 in range(2):
            a(f'v_pk_add_f32 {vr(b+2*h2,2)}, {vr(b+2*h2,2)}, {vr(b+8+2*h2,2)}')
        if k < 2: a(f'buffer_store_dwordx4 {vr(b)}, v{VST}, s[12:15], s62 offen offset:{k*256}{SC()}')
        else: a(f'buffer_store_dwordx4 {vr(b)}, v4, s[12:15], s63 offen{SC()}')
```

```python
from common import *
import common

OPT = {}
FM_1B = WS_FL + 4096
FM_1A = FM_1B + 16
QBT = 65536
RED = 81920
QAT = 131072
XBUF = 0; XSZ = 32768; XRING = 3*XSZ
WBUF = XRING; WH = 12288; WRING = 5*WH
WPHI = WBUF + WRING
K1_LDS = WPHI + 4096

def accQ(db, tb): return 0 + (db*4 + tb)*4
def accK(db, tb): return 32 + (db*4 + tb)*4
def accV(tb, db): return 64 + (tb*2 + db)*4
def fX(st, tb): return 96 + st*40 + tb*4
def fW(st, seg, db): return 96 + st*40 + 16 + (seg*2 + db)*4
VXD = 176; VWD = 180; VXR = 181; VWR = 183; VLANE = 185; VST = 186; VSTK = 187
VXB = 214; VWB = 215

def ring(s, inc, size, t='s34'):
    return [f's_add_u32 s{s}, s{s}, {inc}', f's_sub_u32 {t}, s{s}, {size}', f's_min_u32 s{s}, s{s}, {t}']

def dma_w(k):
    adv = ring(27+k, 393216, 16*393216, 's59') if OPT.get('rot') else [f's_add_u32 s{27+k}, s{27+k}, 393216']
    return [[f's_add_u32 m0, s{31+k}, {WBUF}'], [f'buffer_load_dwordx4 v{VWD}, s[8:11], s{27+k} offen{OPT.get("wfl", "")} lds'] + adv,
            ring(31+k, 2*WH, WRING)]
def dma_x(i):
    r = [[f's_add_u32 m0, s30, {XBUF + i*1024}'], [f'buffer_load_dwordx4 v{VXD+i}, s[4:7], s26 offen{OPT.get("xfl", "")} lds']]
    if i == 3:
        if OPT.get('xfix'): r.append(ring(30, XSZ, XRING))
        elif OPT.get('rot'): r.append(['s_add_u32 s59, s26, 128', 's_and_b32 s59, s59, 0x7ff', 's_and_b32 s26, s26, 0xfffff800', 's_or_b32 s26, s26, s59'] + ring(30, XSZ, XRING))
        else: r.append(['s_add_u32 s26, s26, 128'] + ring(30, XSZ, XRING))
    return r

def pf_w():
    if OPT.get('rot'):
        return ['buffer_load_dword v213, v212, s[8:11], s64 offen'] + ring(64, 393216, 16*393216, 's59')
    return [f'buffer_load_dword v213, v212, s[8:11], s64 offen{OPT.get("pffl", "")}', 's_add_u32 s64, s64, 393216', 's_min_u32 s64, s64, s65']
def pf_x():
    return ['buffer_load_dword v238, v237, s[4:7], s57 offen', 's_add_u32 s57, s57, 128', 's_min_u32 s57, s57, s59']
def read_items(st, kh):
    it = []
    def rx(tb): return [f'ds_read_b128 {vr(fX(st,tb))}, v{VXR+kh} offset:{tb*2048}']
    def rw(seg, db, jj):
        r = fW(st, seg, db) + 2*jj
        return [f'ds_read_b64_tr_b16 {vr(r,2)}, v{VWR+db} offset:{seg*1024 + jj*256}']
    it += [rx(0), rw(0,0,0), rw(0,0,1), rx(1), rx(2), rx(3)]
    for seg, db in [(0,1),(1,0),(1,1),(2,0),(2,1)]:
        it += [rw(seg,db,0), rw(seg,db,1)]
    return it
def read_addr(kh):
    r = [f'v_add_u32 v{VWR}, s68, v{VWB}', f'v_xor_b32 v{VWR+1}, {32 if OPT.get("kq") else 128}, v{VWR}'] + ring(68, WH, WRING, 's35')
    if kh == 0:
        r += [f'v_add_u32 v{VXR}, s69, v{VXB}', f'v_xor_b32 v{VXR+1}, 64, v{VXR}'] + ring(69, XSZ, XRING, 's35')
    return r

def mfmas(st, zero=False):
    m = []
    if OPT.get('m32hack'):
        for j in range(12):
            seg, kk, tbb = j // 4, (j % 4) // 2, j % 2
            d = 32*seg + 16*tbb
            m += [f'v_mfma_f32_32x32x16_bf16 {vr(d,16)}, {vr(fW(st,seg,kk))}, {vr(fX(st,2*kk+tbb))}, {"0" if zero and kk == 0 else vr(d,16)}', None]
        return m
    for seg in range(3):
        for db in range(2):
            rev = (OPT.get('snake', 0) & 1) and (seg*2 + db) % 2 == 0
            for tb in (range(3, -1, -1) if rev else range(4)):
                if seg < 2:
                    d = accQ(db,tb) if seg == 0 else accK(db,tb)
                    m.append(f'v_mfma_f32_16x16x32_bf16 {vr(d)}, {vr(fW(st,seg,db))}, {vr(fX(st,tb))}, {"0" if zero else vr(d)}')
                else:
                    d = accV(tb,db)
                    m.append(f'v_mfma_f32_16x16x32_bf16 {vr(d)}, {vr(fX(st,tb))}, {vr(fW(st,seg,db))}, {"0" if zero else vr(d)}')
    return m

def place(m, items):
    out = []
    by = {}
    for sl, l in items: by.setdefault(sl, []).append(l)
    assert all(0 <= sl < len(m) for sl in by), sorted(by)
    for i, x in enumerate(m):
        if x is not None: out.append(x)
        elif out and ' m0,' in out[-1]: out.append('s_nop 0')
        for l in by.get(i, []): out += l
    return out

def step(a, cur, reads=True, extra=(), mf=True, zero=False):
    nxt = cur ^ 1; kh = 0 if cur == 1 else 1
    m = mfmas(cur, zero) if mf else []
    it = []
    if reads and not OPT.get('noreads'):
        for x in read_addr(kh): a(x)
        rd = read_items(nxt, kh)
        for i, r in enumerate(rd): it.append((i + OPT.get('rd0', 0), r))
    it += list(extra)
    if mf:
        for x in place(m, it): a(x)
    else:
        for sl, l in sorted(it, key=lambda t: t[0]):
            for x in l: a(x)
            if 'm0' in l[0]: a('s_nop 0')

_sg = [0]
def stag_dma():
    sa, sb = OPT['stag']
    def blk(name):
        if name[0] == 'w':
            d = dma_w(int(name[1])); return d[0] + d[2] + d[1]
        if name[0] == 'x':
            i = int(name[1]); d = dma_x(i)
            return d[0] + ['s_nop 0'] + d[1] + (d[2] if i == 3 else [])
        return pf_w()
    out = ([], [])
    for role, plan in enumerate((sa, sb)):
        names = [n for n, st, sl in plan]
        pos = [st*24 + sl for n, st, sl in plan]
        assert pos == sorted(pos) and names[:2] == ['w0', 'w1'] and sorted(names) == ['p', 'w0', 'w1', 'w2', 'x0', 'x1', 'x2', 'x3'], plan
        xs = [n for n in names if n[0] == 'x']; assert xs == ['x0', 'x1', 'x2', 'x3']
        for n, st, sl in plan:
            other = (sb if role == 0 else sa)
            if (n, st, sl) in other:
                if role == 0: out[st].append((sl, blk(n)))
                continue
            _sg[0] += 1; lab = f'K1_sg{_sg[0]}'
            out[st].append((sl, [f's_cbranch_vcc{"z" if role == 0 else "nz"} {lab}'] + blk(n) + [f'{lab}:']))
    return out
def stage_dma(level, first=False):
    if OPT.get('nodma'): level = 0
    if level == 2 and OPT.get('stag') and not first: return stag_dma()
    A = []; B = []
    if level >= 1:
        w0 = dma_w(0); A += [(0, w0[0]), (1, w0[1]), (2, w0[2])]
    if level == 2:
        w1 = dma_w(1); w2 = dma_w(2)
        A += [(2, w1[0]), (3, w1[1]), (4, w1[2])]
        w2stp, w2sl = OPT.get('w2s', (0, 5))
        (A if w2stp == 0 else B).extend([(w2sl, w2[0]), (w2sl + 1, w2[1]), (w2sl + 2, w2[2])])
        xs = OPT.get('xslots', [(0, 12), (0, 18), (1, 4), (1, 12)])
        for i in range(4):
            d = dma_x(i); stp, sl = xs[i]
            tgt = A if stp == 0 else B
            tgt += [(sl, d[0]), (sl + 1, d[1])]
            if i == 3: tgt += [(sl + 2, d[2])]
        if OPT.get('pfw'): (A if OPT.get('pfA') else B).append((OPT.get('pfslot', 16), pf_w()))
        if OPT.get('pfx'): B += [(OPT.get('pfxslot', 20), pf_x())]
    return A, B

def gate_loads(a, part=3):
    lab = f'K1_nogl{part}'
    a('s_cmp_eq_u32 s23, 0'); a(f's_cbranch_scc1 {lab}')
    a(f'v_lshlrev_b32 v240, 5, v{VLANE}')
    if part & 1:
        a('s_lshl_b32 s35, s56, 11')
        a('buffer_load_dwordx4 v[188:191], v240, s[4:7], s35 offen'); a('buffer_load_dwordx4 v[192:195], v240, s[4:7], s35 offen offset:16')
        a('buffer_load_dwordx4 v[196:199], v240, s[4:7], s35 offen offset:2048'); a('buffer_load_dwordx4 v[200:203], v240, s[4:7], s35 offen offset:2064')
    if part & 2:
        a('buffer_load_dwordx4 v[204:207], v240, s[16:19], 0 offen'); a('buffer_load_dwordx4 v[208:211], v240, s[16:19], 0 offen offset:16')
    a(f'{lab}:')

def wphi_load(a, head):
    a('s_cmp_ge_u32 s20, 2'); a('s_cbranch_scc1 K1_nowp')
    a('s_lshl_b32 s34, s20, 10'); a(f's_add_u32 m0, s34, {WPHI}')
    a(f's_lshl_b32 s35, {head}, 11'); a('s_add_u32 s35, s35, s34'); a(f'v_lshlrev_b32 v241, 4, v{VLANE}')
    a('buffer_load_dwordx4 v241, s[16:19], s35 offen lds')
    a('K1_nowp:')

def gate_slots():
    G0 = 216; T = 218
    g = [['s_mov_b32 s57, 0xffff0000', f'v_mov_b32 v{G0}, 0', f'v_mov_b32 v{G0+1}, 0']]
    for i in range(8):
        g.append([f'v_lshlrev_b32 v{T}, 16, v{204+i}', f'v_and_b32 v{T+1}, s57, v{204+i}'])
        for t in range(2):
            x = 188 + 8*t + i
            g.append([f'v_lshlrev_b32 v{T+2}, 16, v{x}', f'v_and_b32 v{T+3}, s57, v{x}'])
            g.append([f'v_fmac_f32 v{G0+t}, v{T}, v{T+2}', f'v_fmac_f32 v{G0+t}, v{T+1}, v{T+3}'])
    for sh in ['row_shr:1', 'row_shr:2', 'row_shr:4', 'row_shr:8']:
        g.append([f'v_add_f32_dpp v{G0+t}, v{G0+t}, v{G0+t} {sh} row_mask:0xf bank_mask:0xf bound_ctrl:0' for t in range(2)])
    g.append([f'v_add_f32_dpp v{G0+t}, v{G0+t}, v{G0+t} row_bcast:15 row_mask:0xa bank_mask:0xf' for t in range(2)])
    g.append([f'v_add_f32_dpp v{G0+t}, v{G0+t}, v{G0+t} row_bcast:31 row_mask:0xc bank_mask:0xf' for t in range(2)])
    g.append([f's_mov_b32 s57, {fhex(-LOG2E)}'] + [f'v_mul_f32 v{G0+t}, s57, v{G0+t}' for t in range(2)])
    g.append([f'v_exp_f32 v{G0+t}, v{G0+t}' for t in range(2)])
    g.append([f'v_add_f32 v{G0+t}, 1.0, v{G0+t}' for t in range(2)])
    g.append([f'v_rcp_f32 v{G0+t}, v{G0+t}' for t in range(2)])
    g.append([f'v_cmp_eq_u32 vcc, 63, v{VLANE}', f'v_mov_b32 v{T}, 0x7ffff000', f'v_mov_b32 v{T+1}, 0', 's_lshr_b32 s59, s56, 3', 's_lshl_b32 s59, s59, 7',
              's_lshl_b32 s57, s24, 3', 's_add_u32 s59, s59, s57', f's_add_u32 s59, s59, {WS_G}',
              f'v_cndmask_b32 v{T}, v{T}, v{T+1}, vcc', f'buffer_store_dwordx2 v[{G0}:{G0+1}], v{T}, s[12:15], s59 offen sc1'])
    return g
_gl = [0]
def gate_extra(groups, first=1):
    out = []
    for i, l in enumerate(groups):
        _gl[0] += 1
        out.append((first + i, ['s_cmp_eq_u32 s23, 0', f's_cbranch_scc1 K1_g{_gl[0]}'] + l + [f'K1_g{_gl[0]}:']))
    return out

def stage(a, level, vm, first=False, gate=None):
    if OPT.get('probe') is not None and level == OPT['probe'] and level < 2:
        a('s_cmp_eq_u32 s23, 0'); a('s_cbranch_scc1 K1_probeA'); a('K1_probeA_b:')
    a(f's_waitcnt vmcnt({vm}) lgkmcnt(0)')
    if first:
        a('s_cmp_eq_u32 s94, 1'); a('s_cbranch_scc0 K1_nord0'); a('s_waitcnt vmcnt(0)'); a('K1_nord0:')
    a('s_barrier')
    if first:
        a('s_cmp_eq_u32 s20, 0'); a('s_cselect_b32 s94, s94, 0'); a('s_cmp_eq_u32 s94, 1'); a('s_cbranch_scc0 K1_nordy')
        a('v_mov_b32 v244, 1'); a('s_mov_b64 exec, 1')
        a('buffer_store_dword v244, off, s[52:55], 0 sc1'); a('s_mov_b64 exec, -1')
        a('K1_nordy:')
    if level == 1: a('buffer_load_dword v239, off, s[52:55], 0 sc1')
    if level == 1 and OPT.get('gl14'): gate_loads(a, OPT['gl14'])
    if level == 1 and OPT.get('cpf2'): a('global_load_dword v250, v[248:249], off')
    if first:
        if not OPT.get('minst'): stamp(a, 1)
        gpart = 3 & ~OPT.get('gl14', 0)
        late = OPT.get('pb') == 2
        if not late:
            if not OPT.get('gate_pro') and gpart: gate_loads(a, gpart)
            if OPT.get('pb'): wphi_load(a, 's95')
    if first and OPT.get('xall') == 'st0': a('buffer_load_dword v251, v255, s[4:7], s70 offen')
    A, B = stage_dma(level, first)
    if first and late:
        S1 = []; sl = 20
        for d in [dma_w(2)] + [dma_x(i) for i in range(4)]:
            for l in d: S1.append((sl, l)); sl += 1
        if OPT.get('pfw'): S1.append((sl, pf_w())); sl += 1
        t = Asm()
        if gpart: gate_loads(t, gpart)
        wphi_load(t, 's95')
        A = S1 + [(100 + s_, l) for s_, l in A] + [(300, [x for x in t.lines if x])]
    if gate: A = A + gate[0]; B = B + gate[1]
    if level == 1:
        w1 = dma_w(1)
        step(a, 1, extra=A)
        lab = a.label('K1_sk')
        a('s_bitcmp1_b32 s20, 1'); a(f's_cbranch_scc1 {lab}')
        for x in w1[0]: a(x)
        a('s_nop 0')
        for x in w1[1]: a(x)
        a(f'{lab}:')
    else:
        step(a, 1, extra=A, mf=not first)
    a('s_waitcnt lgkmcnt(0)')
    step(a, 0, extra=B, zero=(first and bool(OPT.get('kc0'))))

def code_pf(a, name):
    N = OPT.get('cpfn', 17); st = OPT.get('cpfs', 64)
    a('s_getpc_b64 s[62:63]'); a('K1_pc:')
    a(f's_sub_u32 s62, s62, K1_pc-{name}'); a('s_subb_u32 s63, s63, 0')
    a('s_bfe_u32 s60, s2, 0x20003'); a('s_lshl_b32 s60, s60, 3'); a('s_add_u32 s60, s60, s20'); a(f's_mul_i32 s60, s60, {N*st}')
    if OPT.get('cpf0'): a(f's_add_u32 s60, s60, {OPT["cpf0"]}')
    a(f'v_min_u32 v248, {N-1}, v{VLANE}'); a(f'v_mul_u32_u24 v248, {st}, v248'); a('v_add_u32 v248, s60, v248')
    a(f'v_min_u32 v248, K2_end-{name}, v248')
    a('v_mov_b32 v249, s63'); a('v_add_co_u32 v248, vcc, s62, v248'); a('s_nop 1'); a('v_addc_co_u32 v249, vcc, 0, v249, vcc')
    a('global_load_dword v250, v[248:249], off')

def gen_k1(a, name):
    if OPT.get('pal') is not None:
        a('; never executed: places the entry point at the start of a 4 KB page (the instruction prefetch does not cross pages)')
        a('.p2alignl 12, 0xbf810000'); a(f'.fill {(0x1000 - 0x300 + OPT["pal"]) // 4}, 4, 0xbf810000')
    kernel_begin(a, name)
    a('s_cmp_ge_u32 s2, 256'); a('s_cbranch_scc1 K2_end')
    stamp(a, 0)
    if common.STAMP:
        for r in (86, 87, 88, 89, 92, 93): a(f's_mov_b32 s{r}, 0')
        if OPT.get('minst'):
            for r in range(7): a('s_nop 0')
    if OPT.get('ka4'):
        a('s_load_dwordx8 s[36:43], s[0:1], 0'); a('s_load_dwordx8 s[44:51], s[0:1], 32')
        a('s_load_dwordx4 s[96:99], s[0:1], 64'); a('s_load_dwordx2 s[100:101], s[0:1], 80')
    else:
        a('s_load_dwordx4 s[36:39], s[0:1], 0')
        a('s_load_dwordx2 s[46:47], s[0:1], 40')
        a('s_load_dwordx2 s[50:51], s[0:1], 80')
        a('s_load_dwordx2 s[40:41], s[0:1], 16')
        a('s_load_dwordx2 s[48:49], s[0:1], 56')
        a('s_load_dwordx4 s[96:99], s[0:1], 64')
        a('s_load_dwordx2 s[42:43], s[0:1], 24'); a('s_load_dwordx2 s[44:45], s[0:1], 48')
    if OPT.get('cpf') == 3:
        a('s_getpc_b64 s[62:63]'); a('K1_pc:')
        a('s_lshl_b32 s60, s2, 10'); a('s_and_b32 s60, s60, 0x6000')
        a('v_and_b32 v248, -8, v0'); a('v_lshl_add_u32 v248, v248, 4, s60')
        a('v_mov_b32 v249, s63'); a('v_add_co_u32 v248, vcc, s62, v248'); a('s_nop 1'); a('v_addc_co_u32 v249, vcc, 0, v249, vcc')
        a(f'global_load_dword v250, v[248:249], off offset:{OPT.get("cpf0", 512) - 44}')
    a('s_and_b32 s3, s2, 7'); a('s_lshr_b32 s91, s2, 3')
    xm = OPT.get('xm', 0)
    if xm:
        a(f's_lshr_b32 s22, s3, {xm}'); a(f's_lshl_b32 s22, s22, {2 + xm}'); a(f's_and_b32 s34, s91, {(4 << xm) - 1}'); a('s_add_u32 s22, s22, s34')
    else:
        a('s_lshl_b32 s22, s3, 2'); a('s_and_b32 s34, s91, 3'); a('s_add_u32 s22, s22, s34')
    if OPT.get('hx'): a(f's_xor_b32 s22, s22, {OPT["hx"]}')
    if OPT.get('qmap'):
        qb_, qa_ = OPT['qmap']
        cb = sum(q << (4*i) for i, q in enumerate(qb_)); ca = sum(q << (4*i) for i, q in enumerate(qa_))
        a('s_lshl_b32 s35, s3, 2'); a(f's_lshr_b32 s22, {hex(cb)}, s35'); a('s_and_b32 s22, s22, 7'); a('s_lshl_b32 s22, s22, 2'); a('s_add_u32 s22, s22, s34')
        a(f's_lshr_b32 s57, {hex(ca)}, s35'); a('s_and_b32 s57, s57, 7'); a('s_lshl_b32 s57, s57, 2'); a('s_add_u32 s57, s57, s34')
    if xm:
        a(f's_and_b32 s21, s3, {(1 << xm) - 1}'); a(f's_lshl_b32 s21, s21, {3 - xm}'); a(f's_lshr_b32 s35, s91, {2 + xm}'); a('s_add_u32 s21, s21, s35')
    else: a('s_lshr_b32 s21, s91, 2')
    a('v_lshrrev_b32 v1, 6, v0')
    a(f'v_and_b32 v{VLANE}, 63, v0')
    a('v_readfirstlane_b32 s20, v1')
    L = VLANE
    if OPT.get('cpf') == 1: code_pf(a, name)
    a(f'v_lshrrev_b32 v2, 3, v{L}'); a(f'v_and_b32 v3, 7, v{L}'); a(f'v_lshrrev_b32 v4, 4, v{L}'); a(f'v_and_b32 v5, 15, v{L}')
    a('s_and_b32 s24, s20, 3'); a('s_lshr_b32 s23, s20, 2')
    a('s_and_b32 s66, s20, 1'); a('s_bfe_u32 s67, s20, 0x10001')
    a('v_xor_b32 v6, v3, v4'); a('v_lshlrev_b32 v6, 4, v6'); a(f'v_lshl_add_u32 v{VXD}, v2, 11, v6')
    a(f'v_xor_b32 v6, 64, v6'); a(f'v_lshl_add_u32 v6, v2, 11, v6')
    a(f'v_add_u32 v{VXD+1}, 16384, v6'); a(f'v_add_u32 v{VXD+2}, 32768, v{VXD}'); a(f'v_add_u32 v{VXD+3}, 49152, v6')
    if not OPT.get('kq'):
        a('v_lshlrev_b32 v6, 2, v4'); a(f'v_bfe_u32 v7, v{L}, 1, 2'); a('v_add_u32 v6, v6, v7')
        a('v_mul_u32_u24 v6, 6144, v6')
        a('v_lshrrev_b32 v7, 1, v4'); a('v_xor_b32 v7, v7, v2'); a('v_and_b32 v7, 1, v7'); a('v_lshlrev_b32 v7, 5, v7')
        a(f'v_and_b32 v8, 1, v{L}'); a('v_lshlrev_b32 v8, 4, v8')
        a(f'v_add3_u32 v{VWD}, v6, v7, v8')
    else:
        a(f'v_lshrrev_b32 v6, 2, v{L}'); a('v_mul_u32_u24 v6, 6144, v6')
        a(f'v_lshrrev_b32 v7, 1, v{L}'); a(f'v_lshrrev_b32 v8, 5, v{L}'); a('v_xor_b32 v7, v7, v8'); a('v_and_b32 v7, 1, v7'); a('v_lshlrev_b32 v7, 5, v7')
        a(f'v_and_b32 v8, 1, v{L}'); a('v_lshlrev_b32 v8, 4, v8')
        a(f'v_add3_u32 v{VWD}, v6, v7, v8')
    if OPT.get('x128'):
        a(f'v_lshrrev_b32 v6, 5, v{L}'); a('v_lshlrev_b32 v6, 2, v6'); a(f'v_bfe_u32 v7, v{L}, 1, 2'); a('v_add_u32 v6, v6, v7')
        if OPT['x128'] == 2: a('v_lshlrev_b32 v6, 1, v6')
        a('v_mul_u32_u24 v6, 6144, v6'); a('v_and_b32 v7, 3, v2'); a('v_lshlrev_b32 v7, 5, v7')
        a(f'v_add3_u32 v{VWD}, v6, v7, v8')
    a('v_lshrrev_b32 v6, 1, v5'); a('v_xor_b32 v6, v6, v4'); a('v_lshlrev_b32 v6, 4, v6')
    a('v_lshl_add_u32 v6, v5, 7, v6'); a('s_lshl_b32 s34, s24, 13'); a(f'v_add_u32 v{VXB}, s34, v6')
    kq = OPT.get('kq')
    a('v_lshrrev_b32 v6, 1, v4'); a('v_mul_u32_u24 v6, 6144, v6'); a('v_and_b32 v7, 1, v4'); a(f'v_mul_u32_u24 v7, {544 if kq else 640}, v7'); a('v_add_u32 v6, v6, v7')
    a(f'v_bfe_u32 v7, v{L}, 2, 2'); a(f'v_lshl_add_u32 v6, v7, {6 if kq else 5}, v6')
    a(f'v_and_b32 v7, 3, v{L}'); a('v_lshl_add_u32 v6, v7, 3, v6')
    a('s_mul_i32 s34, s23, 3072'); a(f's_add_u32 s34, s34, {WBUF}'); a(f'v_add_u32 v{VWB}, s34, v6')
    a('v_lshrrev_b32 v6, 1, v4'); a('v_lshlrev_b32 v6, 10, v6'); a('v_and_b32 v7, 1, v4'); a('v_lshl_add_u32 v6, v7, 9, v6')
    a(f'v_lshl_add_u32 v{VST}, v5, 4, v6')
    if OPT.get('raw'):
        a('v_lshrrev_b32 v7, 2, v5'); a('v_lshl_add_u32 v6, v7, 7, v6'); a('v_and_b32 v7, 3, v5'); a(f'v_lshl_add_u32 v{VSTK}, v7, 4, v6')
    else:
        a('v_lshrrev_b32 v7, 3, v5'); a('v_lshl_add_u32 v6, v7, 8, v6'); a('v_and_b32 v7, 7, v5'); a(f'v_lshl_add_u32 v{VSTK}, v7, 4, v6')
    a('s_lshl_b32 s26, s21, 8'); a('s_lshl_b32 s34, s20, 5'); a('s_add_u32 s26, s26, s34'); a('s_lshl_b32 s26, s26, 11')
    a('s_lshl_b32 s30, s20, 12')
    hax = OPT.get('hax', 0)
    if OPT.get('qmap'): a('s_cmp_eq_u32 s23, 0'); a('s_cselect_b32 s90, s57, s22'); a('s_sub_u32 s91, s57, s22')
    else: a(f's_xor_b32 s90, s22, {hax}'); a('s_cmp_eq_u32 s23, 0'); a('s_cselect_b32 s90, s90, s22')
    a(f's_mul_i32 s35, s66, {16*6144}'); a('s_lshl_b32 s34, s90, 6')
    if OPT.get('x128'): a('s_and_b32 s34, s34, 0xffffff80')
    a('s_add_u32 s35, s35, s34')
    a('s_lshl_b32 s34, s67, 12')
    a('s_add_u32 s27, s35, s34'); a(f's_add_u32 s29, s27, {2*196608}'); a(f's_add_u32 s27, s27, {196608}')
    a(f's_mul_i32 s34, s67, {196608}'); a('s_add_u32 s28, s35, s34'); a(f's_add_u32 s28, s28, {196608 + 2048}')
    a('s_mul_i32 s35, s66, 6144'); a('s_mul_i32 s34, s23, 3072'); a('s_add_u32 s35, s35, s34'); a('s_lshl_b32 s34, s67, 11')
    a('s_add_u32 s31, s35, s34'); a(f's_add_u32 s33, s31, {2*WH}'); a(f's_add_u32 s31, s31, {WH}')
    a(f's_mul_i32 s34, s67, {WH}'); a('s_add_u32 s32, s35, s34'); a(f's_add_u32 s32, s32, {WH + 1024}')
    a('s_mov_b32 s68, 0'); a('s_mov_b32 s69, 0')
    rot = OPT.get('rot')
    if rot:
        if rot == 'xcd': a('s_lshl_b32 s57, s3, 1')
        elif rot == 'tb': a('s_lshl_b32 s57, s21, 1')
        elif rot == 'mix': a('s_add_u32 s57, s3, s21'); a('s_and_b32 s57, s57, 7'); a('s_lshl_b32 s57, s57, 1')
        elif rot == 'xcd1': a('s_mov_b32 s57, s3')
        elif rot == 'zero': a('s_mov_b32 s57, 0')
        a('s_lshl_b32 s34, s57, 7'); a('s_add_u32 s26, s26, s34')
        a('s_mul_i32 s57, s57, 393216')
        for r in (27, 28, 29): a(f's_add_u32 s{r}, s{r}, s57')
    if OPT.get('xall'):
        a(f'v_min_u32 v255, 31, v{L}'); a('v_lshlrev_b32 v255, 6, v255')
        a('s_lshl_b32 s70, s2, 3'); a('s_add_u32 s70, s70, s20'); a('s_lshl_b32 s70, s70, 11')
    ppf = OPT.get('ppf') or []
    if ppf:
        a(f'v_min_u32 v253, 15, v{L}'); a('v_and_b32 v254, 1, v253'); a('v_lshrrev_b32 v253, 1, v253'); a('v_lshlrev_b32 v253, 11, v253'); a('v_lshl_add_u32 v253, v254, 6, v253')
        a(f'v_min_u32 v254, 5, v{L}'); a('v_and_b32 v252, 1, v254'); a('v_lshrrev_b32 v254, 1, v254'); a('v_lshlrev_b32 v254, 11, v254'); a('v_lshl_add_u32 v254, v252, 6, v254')
        a('s_and_b32 s34, s22, 3'); a('s_lshl_b32 s34, s34, 3'); a('s_add_u32 s34, s34, s20'); a('s_lshl_b32 s34, s34, 3'); a('s_lshl_b32 s35, s21, 8'); a('s_add_u32 s34, s34, s35')
        a('s_lshl_b32 s60, s34, 11')
        a('s_and_b32 s34, s90, 1'); a('s_lshl_b32 s34, s34, 3'); a('s_add_u32 s34, s34, s21'); a('s_lshl_b32 s34, s34, 2'); a('s_add_u32 s34, s34, s24')
        a('s_mul_i32 s61, s34, 6144'); a('s_lshr_b32 s34, s90, 1'); a('s_lshl_b32 s34, s34, 7'); a('s_add_u32 s61, s61, s34')
    def ppf_issue(at):
        for it in ppf:
            nm, where = it
            if where != at: continue
            st = int(nm[1])
            if nm[0] == 'x': a(f'buffer_load_dword v251, v253, s[4:7], s60 offen offset:{128*st}')
            else:
                if st: a(f's_add_u32 s34, s61, {393216*st}')
                a(f'buffer_load_dword v252, v254, s[8:11], {"s34" if st else "s61"} offen')
    a('s_waitcnt lgkmcnt(0)')
    if OPT.get('st_ka'): stamp(a, OPT['st_ka'])
    a('s_cmp_eq_u32 s23, 0')
    a('s_mov_b32 s4, s36'); a('s_mov_b32 s5, s37'); a('s_mov_b32 s6, 4194304'); a('s_mov_b32 s7, 0x20000')
    if OPT.get('wsame'): a('s_mov_b32 s46, s38'); a('s_mov_b32 s47, s39')
    a('s_cselect_b32 s8, s38, s46'); a('s_cselect_b32 s9, s39, s47'); a('s_mov_b32 s10, 6291456'); a('s_mov_b32 s11, 0x20000')
    if OPT.get('ka4'): a('s_mov_b32 s44, s48'); a('s_mov_b32 s45, s49'); a('s_mov_b32 s48, s50'); a('s_mov_b32 s49, s51'); a('s_mov_b32 s50, s100'); a('s_mov_b32 s51, s101')
    a('s_cselect_b32 s16, s40, s48'); a('s_cselect_b32 s17, s41, s49'); a('s_cselect_b32 s18, 32, 1'); a('s_lshl_b32 s18, s18, 11'); a('s_mov_b32 s19, 0x20000')
    ppf_issue(0)
    if OPT.get('xall') == 'pro0': a('buffer_load_dword v251, v255, s[4:7], s70 offen')
    a('s_sub_u32 s35, s27, 196608'); a(f's_add_u32 m0, s31, {WBUF - WH}'); a('s_nop 0')
    a(f'buffer_load_dwordx4 v{VWD}, s[8:11], s35 offen lds')
    a('s_bitcmp1_b32 s20, 1'); a('s_cbranch_scc1 K1_pro0')
    a('s_sub_u32 s35, s28, 196608'); a(f's_add_u32 m0, s32, {WBUF - WH}'); a('s_nop 0')
    a(f'buffer_load_dwordx4 v{VWD}, s[8:11], s35 offen lds')
    a('K1_pro0:')
    ppf_issue(1)
    if OPT.get('st_a'): stamp(a, OPT['st_a'])
    def dma_x_all():
        for i in range(4):
            d = dma_x(i)
            for x in d[0]: a(x)
            a('s_nop 0')
            for l in d[1:]:
                for x in l: a(x)
    dma_x_all()
    ppf_issue(2)
    if OPT.get('xall') == 'pro': a('buffer_load_dword v251, v255, s[4:7], s70 offen')
    if OPT.get('cpf') == 2: code_pf(a, name)
    if OPT.get('st_b'): stamp(a, OPT['st_b'])
    srd(a, 12, 50, 51, ws_size())
    srd(a, 52, 98, 99, 256)
    a('s_cmp_eq_u32 s2, 8'); a('s_cselect_b32 s94, 1, 0')
    a('s_cbranch_scc0 K1_noclr')
    for r in range(4): a(f'v_mov_b32 v{244+r}, 0')
    a(f'v_lshlrev_b32 v243, 4, v{L}'); a('s_lshl_b32 s34, s20, 12'); a(f's_add_u32 s34, s34, {FM_1B}')
    for i in range(4): a(f'buffer_store_dwordx4 v[244:247], v243, s[12:15], s34 offen offset:{i*1024} sc1')
    a('s_lshl_b32 s34, s20, 8'); a(f's_add_u32 s34, s34, {WS_FL}'); a(f'v_min_u32 v243, 15, v{L}'); a('v_lshlrev_b32 v243, 4, v243')
    a('buffer_store_dwordx4 v[244:247], v243, s[12:15], s34 offen sc1')
    a('K1_noclr:')
    if OPT.get('pb'): a('s_mov_b32 s95, s90')
    else: wphi_load(a, 's90')
    a('s_lshl_b32 s56, s21, 5'); a('s_add_u32 s56, s56, s22'); a('s_lshl_b32 s56, s56, 2'); a('s_add_u32 s56, s56, s24'); a('s_lshl_b32 s56, s56, 1')
    if OPT.get('gate_pro'): gate_loads(a)
    late = OPT.get('pb') == 2
    for k in range(2 if late else 3):
        if k == 2 and OPT.get('pb'): a('s_barrier')
        d = dma_w(k)
        for x in d[0]: a(x)
        a('s_nop 0')
        for l in d[1:]:
            for x in l: a(x)
    if OPT.get('st_c'): stamp(a, OPT['st_c'])
    if not late: dma_x_all()
    if OPT.get('pfw'):
        Lp = OPT['pfw']
        if xm:
            a('s_and_b32 s34, s90, 1'); a(f's_lshl_b32 s34, s34, {3 - xm}'); a(f's_and_b32 s35, s21, {(8 >> xm) - 1}'); a('s_add_u32 s34, s34, s35')
            a('s_lshl_b32 s34, s34, 2'); a('s_add_u32 s34, s34, s24')
        else:
            a('s_and_b32 s34, s90, 1'); a('s_lshl_b32 s34, s34, 3'); a('s_add_u32 s34, s34, s21'); a('s_lshl_b32 s34, s34, 2'); a('s_add_u32 s34, s34, s24')
        a('s_mul_i32 s64, s34, 6144'); a('s_lshr_b32 s34, s90, 1')
        if OPT.get('pfxor'): a(f's_xor_b32 s34, s34, {OPT["pfxor"]}')
        a('s_lshl_b32 s34, s34, 7'); a('s_add_u32 s64, s64, s34')
        a(f's_add_u32 s65, s64, {15*393216}'); a(f's_add_u32 s64, s64, {(Lp-1)*393216}')
        if OPT.get('pfe'):
            a('s_bitcmp0_b32 s90, 0'); a(f's_cselect_b32 s34, {OPT["pfe"]*393216}, 0'); a('s_add_u32 s64, s64, s34')
        if rot:
            a('s_add_u32 s64, s64, s57'); a(f's_sub_u32 s59, s64, {16*393216}'); a('s_min_u32 s64, s64, s59')
        if xm:
            a(f'v_min_u32 v212, {(6 << xm) - 1}, v{VLANE}'); a('v_mul_u32_u24 v213, 43, v212'); a('v_lshrrev_b32 v213, 8, v213')
            a('v_mul_u32_u24 v6, 6, v213'); a('v_sub_u32 v212, v212, v6'); a(f'v_mul_u32_u24 v6, {(64 >> xm) * 6144}, v213')
            a('v_and_b32 v213, 1, v212'); a('v_lshrrev_b32 v212, 1, v212'); a('v_lshlrev_b32 v212, 11, v212')
            a('v_lshl_add_u32 v212, v213, 6, v212'); a('v_add_u32 v212, v212, v6')
        elif OPT.get('pf2'):
            a(f'v_min_u32 v212, 5, v{VLANE}'); a('v_and_b32 v213, 1, v212'); a('v_lshrrev_b32 v212, 1, v212'); a('v_lshlrev_b32 v212, 11, v212')
            a('v_lshl_add_u32 v212, v213, 6, v212')
        else:
            a(f'v_min_u32 v212, 2, v{VLANE}'); a('v_lshlrev_b32 v212, 11, v212')
        if not late:
            for x in pf_w(): a(x)
    if OPT.get('pfx'):
        Lx = OPT['pfx']
        a('s_and_b32 s34, s22, 3'); a('s_lshl_b32 s34, s34, 3'); a('s_add_u32 s34, s34, s20'); a('s_lshl_b32 s34, s34, 3'); a('s_lshl_b32 s35, s21, 8'); a('s_add_u32 s34, s34, s35')
        a('s_lshl_b32 s57, s34, 11'); a(f's_add_u32 s59, s57, {15*128}'); a(f's_add_u32 s57, s57, {(Lx-1)*128}')
        if OPT.get('pfx2'):
            a(f'v_min_u32 v237, 15, v{VLANE}'); a('v_and_b32 v238, 1, v237'); a('v_lshrrev_b32 v237, 1, v237'); a('v_lshlrev_b32 v237, 11, v237'); a('v_lshl_add_u32 v237, v238, 6, v237')
        else:
            a(f'v_and_b32 v237, 7, v{VLANE}'); a('v_lshlrev_b32 v237, 11, v237')
        for x in pf_x(): a(x)
    if OPT.get('st_iss'): stamp(a, OPT['st_iss'])
    if not OPT.get('kc0'):
        for r in range(96): a(f'v_mov_b32 v{r}, 0')
    if OPT.get('padP'):
        a('s_branch K1_padP'); a(f'.fill {OPT["padP"] // 4 - 1}, 4, 0xbf800000'); a('K1_padP:')
    if OPT.get('st_w0'):
        a('s_waitcnt vmcnt(%d)' % OPT.get('w0cnt', 9)); stamp(a, OPT['st_w0'])
    vm = (6 if OPT.get('pfw') else 5) + (1 if OPT.get('pfx') else 0)
    stage(a, 2, 0 if late else vm, first=True)
    a('s_mov_b32 s90, 13')
    if OPT.get('stag'): a('s_cmp_eq_u32 s23, 0'); a('s_cselect_b64 vcc, -1, 0')
    if OPT.get('alK'):
        a('s_branch K1_loop'); a('; never executed: the main loop starts a new page'); a(f'.p2alignl {OPT["alK"]}, 0xbf810000')
    if OPT.get('padK') is not None:
        a('s_branch K1_loop'); a('.p2align 6')
        if OPT['padK']: a(f'.fill {OPT["padK"] // 4}, 4, 0xbf800000')
    a('K1_loop:')
    stage(a, 2, vm)
    a('s_sub_u32 s90, s90, 1'); a('s_cmp_lg_u32 s90, 0'); a('s_cbranch_scc1 K1_loop')
    stage(a, 1, vm)
    if OPT.get('gk1'):
        _gl[0] = 0
        g = gate_slots(); m = OPT['gk1']
        n1 = 41
        def merge(l, k): return [sum(l[i:i+k], []) for i in range(0, len(l), k)]
        pr = merge(g[:n1], m); h = (len(pr) + 1) // 2
        tail = g[n1:]
        stage(a, 0, 0, gate=(gate_extra(pr[:h]), gate_extra(pr[h:])))
    else:
        stage(a, 0, 0)
    a('s_waitcnt lgkmcnt(0)')
    a('s_barrier')
    step(a, 1, reads=False, extra=(gate_extra(tail) if OPT.get('gk1') else ()))
    if not OPT.get('minst'): stamp(a, 2)
    a('v_cmp_ne_u32 vcc, 1, v239'); a('s_nop 1'); a('s_cbranch_vccnz K1_spinR'); a('K1_spinR_b:')
    a('s_lshl_b32 s58, s21, 3'); a('s_lshl_b32 s34, s24, 1'); a('s_add_u32 s58, s58, s34')
    a('s_lshl_b32 s95, s21, 5'); a('s_add_u32 s95, s95, s22'); a('s_lshl_b32 s95, s95, 5'); a('s_add_u32 s95, s95, s24'); a('s_lshl_b32 s95, s95, 2')
    a(f's_add_u32 s95, s95, {FM_1B}')
    if OPT.get('afirst'):
        a('s_cmp_eq_u32 s23, 0'); a('s_cbranch_scc0 K1_epiB'); return
    a('s_cmp_eq_u32 s23, 0'); a('s_cbranch_scc1 K1_epiA')
    if OPT.get('prioB'): a(f's_setprio {OPT["prioB"]}')
    epi_B(a)

def pack_qk(acc, T):
    out = []
    for tb in range(4):
        for db in range(2):
            r = acc(db, tb)
            out.append(f'v_cvt_pk_bf16_f32 v{T+tb*4+db*2}, v{r}, v{r+1}')
            out.append(f'v_cvt_pk_bf16_f32 v{T+tb*4+db*2+1}, v{r+2}, v{r+3}')
    return out
def pack_v(T):
    out = []
    for b in range(2):
        for db in range(2):
            for tl in range(2):
                r = accV(2*b+tl, db)
                out.append(f'v_cvt_pk_bf16_f32 v{T+(b*2+db)*4+tl*2}, v{r}, v{r+1}')
                out.append(f'v_cvt_pk_bf16_f32 v{T+(b*2+db)*4+tl*2+1}, v{r+2}, v{r+3}')
    return out

def epi_B(a):
    c = 32**-0.5 * LOG2E
    a(f's_mov_b32 s60, {fhex(c)}'); a(f's_mov_b32 s61, {fhex(c)}')
    a('s_lshl_b32 s63, s22, 18'); a('s_lshl_b32 s34, s58, 12'); a('s_add_u32 s63, s63, s34')
    a(f's_add_u32 s63, s63, {WS_KVB}'); a('s_add_u32 s64, s63, 4096')
    a('s_lshl_b32 s34, s24, 13'); a(f'v_add_u32 v240, s34, v{VSTK}'); a(f'v_add_u32 v241, s34, v{VST}')
    a('s_lshl_b32 s34, s24, 12'); a(f's_add_u32 s34, s34, {QBT}'); a(f'v_add_u32 v242, s34, v{VST}')
    for x in pack_qk(accK, 112): a(x)
    for tb in range(4):
        a(f'buffer_store_dwordx4 {vr(112+tb*4)}, v{VSTK}, s[12:15], s{63+(tb>>1)} offen offset:{(tb&1)*(64 if OPT.get("raw") else 128)} sc1')
    for x in pack_v(128): a(x)
    for b in range(2):
        for db in range(2):
            a(f'buffer_store_dwordx4 {vr(128+(b*2+db)*4)}, v{VST}, s[12:15], s{63+b} offen offset:{2048+db*256} sc1')
    for r in range(0, 32, 2): a(f'v_pk_mul_f32 {vr(r,2)}, {vr(r,2)}, s[60:61]')
    for tb in range(4):
        a(f'ds_write_b128 v240, {vr(112+tb*4)} offset:{(tb>>1)*4096 + (tb&1)*(64 if OPT.get("raw") else 128)}')
    for x in pack_qk(accQ, 96): a(x)
    for b in range(2):
        for db in range(2):
            a(f'ds_write_b128 v241, {vr(128+(b*2+db)*4)} offset:{b*4096 + 2048 + db*256}')
    for tb in range(4):
        a(f'ds_write_b128 v242, {vr(96+tb*4)} offset:{(tb>>1)*2048+(tb&1)*256}')
    if OPT.get('gk1'): return
    a('s_mov_b32 s34, 0xffff0000')
    a('v_mov_b32 v0, 0'); a('v_mov_b32 v1, 0')
    for i in range(8):
        a(f'v_lshlrev_b32 v2, 16, v{204+i}'); a(f'v_and_b32 v3, s34, v{204+i}')
        for t in range(2):
            x = 188 + 8*t + i
            a(f'v_lshlrev_b32 v4, 16, v{x}'); a(f'v_and_b32 v5, s34, v{x}')
            a(f'v_fmac_f32 v{t}, v2, v4'); a(f'v_fmac_f32 v{t}, v3, v5')
    for sh in ['row_shr:1', 'row_shr:2', 'row_shr:4', 'row_shr:8']:
        a('s_nop 1')
        for t in range(2): a(f'v_add_f32_dpp v{t}, v{t}, v{t} {sh} row_mask:0xf bank_mask:0xf bound_ctrl:0')
    a('s_nop 1')
    for t in range(2): a(f'v_add_f32_dpp v{t}, v{t}, v{t} row_bcast:15 row_mask:0xa bank_mask:0xf')
    a('s_nop 1')
    for t in range(2): a(f'v_add_f32_dpp v{t}, v{t}, v{t} row_bcast:31 row_mask:0xc bank_mask:0xf')
    a(f's_mov_b32 s34, {fhex(-LOG2E)}')
    for t in range(2): a(f'v_mul_f32 v{t}, s34, v{t}')
    for t in range(2): a(f'v_exp_f32 v{t}, v{t}')
    a('s_nop 0')
    for t in range(2): a(f'v_add_f32 v{t}, 1.0, v{t}')
    for t in range(2): a(f'v_rcp_f32 v{t}, v{t}')
    a(f'v_cmp_eq_u32 vcc, 63, v{VLANE}')
    a('v_mov_b32 v2, 0x7ffff000')
    a('s_lshr_b32 s34, s56, 3'); a('s_lshl_b32 s34, s34, 7'); a('s_lshl_b32 s35, s24, 3'); a('s_add_u32 s34, s34, s35')
    a(f's_add_u32 s34, s34, {WS_G}')
    a('v_mov_b32 v3, 0')
    a('v_cndmask_b32 v2, v2, v3, vcc')
    a(f'buffer_store_dwordx2 v[0:1], v2, s[12:15], s34 offen sc1')

def red_B(a):
    L = VLANE
    a(f'v_lshlrev_b32 v243, 4, v{L}')
    a('s_lshl_b32 s34, s65, 11'); a(f's_add_u32 s34, s34, {RED}'); a('v_add_u32 v240, s34, v243')
    a('s_lshl_b32 s34, s65, 10'); a(f's_add_u32 s34, s34, {RED + 8192}'); a('v_add_u32 v241, s34, v243')
    for k in range(3):
        for t in range(4):
            if k < 2: a(f'ds_read_b128 {vr(192+(k*4+t)*4)}, v240 offset:{t*12288+k*1024}')
            else: a(f'ds_read_b128 {vr(192+(k*4+t)*4)}, v241 offset:{t*12288}')
    a('s_lshl_b32 s34, s22, 3'); a('s_add_u32 s34, s34, s21')
    a('s_lshl_b32 s46, s34, 13'); a('s_lshl_b32 s35, s65, 11'); a('s_add_u32 s46, s46, s35'); a(f's_add_u32 s46, s46, {WS_KVP}')
    a('s_lshl_b32 s47, s34, 8'); a('s_lshl_b32 s35, s65, 6'); a('s_add_u32 s47, s47, s35'); a(f's_add_u32 s47, s47, {WS_ZP}')
    a(f'v_and_b32 v242, 15, v{L}'); a('v_cmp_eq_u32 vcc, 0, v242'); a(f'v_lshrrev_b32 v242, 4, v{L}'); a('v_lshlrev_b32 v242, 4, v242')
    a('v_mov_b32 v243, 0x7ffff000'); a('v_cndmask_b32 v242, v243, v242, vcc')
def red_B_sum(a):
    for k in range(3):
        b = 192 + k*16
        for h2 in range(2):
            a(f'v_pk_add_f32 {vr(b+2*h2,2)}, {vr(b+2*h2,2)}, {vr(b+4+2*h2,2)}')
            a(f'v_pk_add_f32 {vr(b+8+2*h2,2)}, {vr(b+8+2*h2,2)}, {vr(b+12+2*h2,2)}')
        for h2 in range(2):
            a(f'v_pk_add_f32 {vr(b+2*h2,2)}, {vr(b+2*h2,2)}, {vr(b+8+2*h2,2)}')
def red_B_stores():
    return [f'buffer_store_dwordx4 {vr(192)}, v{VST}, s[12:15], s46 offen sc1', f'buffer_store_dwordx4 {vr(208)}, v{VST}, s[12:15], s46 offen offset:256 sc1',
            f'buffer_store_dwordx4 {vr(224)}, v242, s[12:15], s47 offen sc1']

def epi_A(a):
    QP, KP, VP = 96, 112, 128
    WF = 144; ONES = 152; ID = 156
    L = VLANE
    a(f'v_lshrrev_b32 v162, 4, v{L}'); a(f'v_bfe_u32 v163, v{L}, 2, 2'); a('v_lshl_add_u32 v163, v162, 2, v163')
    a(f'v_and_b32 v164, 3, v{L}'); a('v_lshlrev_b32 v164, 3, v164'); a('v_lshl_add_u32 v163, v163, 6, v164')
    a(f'v_add_u32 v163, {WPHI}, v163')
    for fb in range(2):
        for jj in range(2):
            a(f'ds_read_b64_tr_b16 {vr(WF+fb*4+jj*2,2)}, v163 offset:{fb*32+jj*1024}')
    a('s_lshl_b32 s34, s24, 12'); a(f's_add_u32 s34, s34, {QAT}'); a(f'v_add_u32 v242, s34, v{VST}')
    for x in pack_qk(accK, KP): a(x)
    for x in pack_qk(accQ, QP): a(x)
    for tb in range(4):
        a(f'ds_write_b128 v242, {vr(QP+tb*4)} offset:{(tb>>1)*2048+(tb&1)*256}')
    for x in pack_v(VP): a(x)
    for r in range(4): a(f'v_mov_b32 v{ONES+r}, 0x3f803f80')
    a(f'v_and_b32 v164, 15, v{L}'); a('v_lshlrev_b32 v165, 2, v162'); a('v_sub_u32 v164, v164, v165')
    a('v_and_b32 v165, 1, v164'); a('v_lshlrev_b32 v165, 4, v165'); a('v_mov_b32 v166, 0x3f80'); a('v_lshlrev_b32 v165, v165, v166')
    a('v_lshrrev_b32 v164, 1, v164'); a('v_mov_b32 v166, 0')
    a('v_cmp_eq_u32 vcc, 0, v164'); a(f'v_mov_b32 v{ID}, 0'); a(f'v_mov_b32 v{ID+1}, 0')
    a(f'v_cndmask_b32 v{ID+2}, v166, v165, vcc')
    a('v_cmp_eq_u32 vcc, 1, v164'); a(f'v_mov_b32 v{ID+4}, 0'); a(f'v_mov_b32 v{ID+5}, 0')
    a(f'v_cndmask_b32 v{ID+3}, v166, v165, vcc')
    a('s_waitcnt lgkmcnt(0)')
    def P(tb, fb): return tb*8 + fb*4
    for tb in range(4):
        for fb in range(2):
            a(f'v_mfma_f32_16x16x32_bf16 {vr(P(tb,fb))}, {vr(WF+fb*4)}, {vr(KP+tb*4)}, 0')
    a(f's_mov_b32 s60, {fhex(LOG2E)}'); a(f's_mov_b32 s61, {fhex(LOG2E)}')
    a(f's_mov_b32 s66, {fhex(-LOG2E)}'); a(f's_mov_b32 s67, {fhex(-LOG2E)}')
    a('s_nop 3')
    MX = 162; NM = 166
    for k in range(4):
        for tb in range(4):
            p = tb*8
            if k == 0:
                a(f'v_max3_f32 v{MX+tb}, v{p}, v{p+1}, v{p+2}'); a(f'v_max3_f32 v{NM+tb}, -v{p}, -v{p+1}, -v{p+2}')
            elif k < 3:
                q = p + 1 + 2*k
                a(f'v_max3_f32 v{MX+tb}, v{MX+tb}, v{q}, v{q+1}'); a(f'v_max3_f32 v{NM+tb}, v{NM+tb}, -v{q}, -v{q+1}')
            else:
                a(f'v_max_f32 v{MX+tb}, v{MX+tb}, v{p+7}'); a(f'v_max_f32_e64 v{NM+tb}, v{NM+tb}, -v{p+7}')
    a('s_nop 1')
    for tb in range(4): a(f'v_permlane32_swap_b32 v{MX+tb}, v{NM+tb}')
    for tb in range(4): a(f'v_max_f32 v{MX+tb}, v{MX+tb}, v{NM+tb}')
    a('s_nop 0')
    a(f'v_permlane16_swap_b32 v{MX}, v{MX+1}'); a(f'v_permlane16_swap_b32 v{MX+2}, v{MX+3}')
    a(f'v_max_f32 v{MX}, v{MX}, v{MX+1}'); a(f'v_max_f32 v{MX+2}, v{MX+2}, v{MX+3}')
    M = lambda tb, sg: 220 + (tb*2 + sg)*2
    a(f'v_mov_b32 v{MX+1}, v{MX}'); a(f'v_mov_b32 v{MX+3}, v{MX+2}'); a('s_nop 0')
    a(f'v_permlane16_swap_b32 v{MX}, v{MX+1}'); a(f'v_permlane16_swap_b32 v{MX+2}, v{MX+3}')
    for tb in range(4): a(f'v_mov_b32 v{NM+tb}, v{MX+tb}')
    a('s_nop 0')
    for tb in range(4): a(f'v_permlane32_swap_b32 v{MX+tb}, v{NM+tb}')
    for tb in range(4):
        a(f'v_mul_f32 v{M(tb,0)}, s66, v{MX+tb}'); a(f'v_mul_f32 v{M(tb,1)}, s66, v{NM+tb}')
    E = lambda tb, sg: 32 + sg*32 + tb*8
    for sg in range(2):
        for tb in range(4):
            for i in range(0, 8, 2):
                cs = 's[60:61]' if sg == 0 else 's[66:67]'
                a(f'v_pk_fma_f32 {vr(E(tb,sg)+i,2)}, {vr(tb*8+i,2)}, {cs}, {vr(M(tb,sg),2)} op_sel_hi:[1,1,0]')
    for sg in range(2):
        for tb in range(4):
            for i in range(8): a(f'v_exp_f32 v{E(tb,sg)+i}, v{E(tb,sg)+i}')
    EP = lambda tb, sg: (sg*4 + tb)*4
    a('s_nop 0')
    for sg in range(2):
        for tb in range(4):
            for i in range(4): a(f'v_cvt_pk_bf16_f32 v{EP(tb,sg)+i}, v{E(tb,sg)+2*i}, v{E(tb,sg)+2*i+1}')
    SM = lambda tb, sg: 188 + (sg*4 + tb)*4
    a('s_nop 0')
    for sg in range(2):
        for tb in range(4):
            a(f'v_mfma_f32_16x16x32_bf16 {vr(SM(tb,sg))}, {vr(ONES)}, {vr(EP(tb,sg))}, 0')
    a('s_nop 0')
    RS = lambda tb, sg: 220 + (tb*2 + sg)*2
    for sg in range(2):
        for tb in range(4):
            if sg == 1 and tb == 3: a('s_nop 6')
            a(f'v_rcp_f32 v{RS(tb,sg)}, v{SM(tb,sg)}')
    a('s_nop 0')
    for sg in range(2):
        for tb in range(4):
            for i in range(0, 8, 2):
                a(f'v_pk_mul_f32 {vr(E(tb,sg)+i,2)}, {vr(E(tb,sg)+i,2)}, {vr(RS(tb,sg),2)} op_sel_hi:[1,0]')
    for sg in range(2):
        for tb in range(4):
            for i in range(4): a(f'v_cvt_pk_bf16_f32 v{EP(tb,sg)+i}, v{E(tb,sg)+2*i}, v{E(tb,sg)+2*i+1}')
    D = lambda tb, sg, fb: 32 + ((tb*2 + sg)*2 + fb)*4
    a('s_nop 0')
    for tb in range(4):
        for sg in range(2):
            for fb in range(2):
                idr = ID + 2 if fb == 0 else ID
                a(f'v_mfma_f32_16x16x32_bf16 {vr(D(tb,sg,fb))}, {vr(EP(tb,sg))}, {vr(idr)}, 0')
    PT = lambda b, sg, fb: ((b*2 + sg)*2 + fb)*4
    for b in range(2):
        if b == 1: a('s_nop 3')
        for sg in range(2):
            for fb in range(2):
                for tl in range(2):
                    d = D(2*b+tl, sg, fb)
                    a(f'v_cvt_pk_bf16_f32 v{PT(b,sg,fb)+2*tl}, v{d}, v{d+1}'); a(f'v_cvt_pk_bf16_f32 v{PT(b,sg,fb)+2*tl+1}, v{d+2}, v{d+3}')
    KV = lambda fbs, db: 188 + (fbs*2 + db)*4
    Z = lambda fbs: 220 + fbs*4
    a('s_nop 0')
    for b in range(2):
        for sg in range(2):
            for fb in range(2):
                fbs = sg*2 + fb
                for db in range(2):
                    d = KV(fbs, db)
                    a(f'v_mfma_f32_16x16x32_bf16 {vr(d)}, {vr(PT(b,sg,fb))}, {vr(VP+(b*2+db)*4)}, {"0" if b == 0 else vr(d)}')
                d = Z(fbs)
                a(f'v_mfma_f32_16x16x32_bf16 {vr(d)}, {vr(PT(b,sg,fb))}, {vr(ONES)}, {"0" if b == 0 else vr(d)}')
    a(f's_mul_i32 s34, s24, 12288'); a(f's_add_u32 s34, s34, {RED}'); a(f'v_lshlrev_b32 v0, 4, v{L}'); a('v_add_u32 v1, s34, v0')
    a('s_nop 4')
    for pi in range(8): a(f'ds_write_b128 v1, {vr(188+pi*4)} offset:{pi*1024}')
    for pi in range(4): a(f'ds_write_b128 v1, {vr(220+pi*4)} offset:{8192+pi*1024}')
```

```python
from common import *
import common
OPT = {}
STG = 32768
AFR = 3*STG
WPH = AFR + 4096
ZT = WPH + 2048
ZERO = ZT + 128
XCH = ZERO + 128
K2_LDS = XCH + 8*4352
K2_VGPR = 224
CSHIFT = 80.0
VL = 0; V16 = 1; VCUR = 2; VNXT = 3
Q = (8, 16); NEGM = (24, 40); KB = (56, 64); VB = (72, 80); S = (88, 104); P = 120; O = (128, 144); LS = (160, 164); ONES = 168
KVP_R = 172; KVA = 176; ZR = 180; GR = 181; QA_R = 184
FK = 192; FV = 200; FM = 208

def ring(s, inc, size, t='s34'):
    return [f's_add_u32 s{s}, s{s}, {inc}', f's_sub_u32 {t}, s{s}, {size}', f's_min_u32 s{s}, s{s}, {t}']
def QK(Sd, K, Qr, C):
    return [f'v_mfma_f32_32x32x16_bf16 {vr(Sd,16)}, {vr(K)}, {vr(Qr)}, {C}',
            f'v_mfma_f32_32x32x16_bf16 {vr(Sd,16)}, {vr(K+4)}, {vr(Qr+4)}, {vr(Sd,16)}']
def dma_stage():
    r = ['s_mov_b32 m0, s25', 's_nop 0']
    for i in range(4): r.append(f'buffer_load_dwordx4 v{V16}, s[12:15], s24 offen offset:{i*1024} lds')
    r += ['s_add_u32 s24, s24, 32768'] + ring(25, STG, 3*STG)
    return r

def tile(a, u):
    cur = u & 1; nx = cur ^ 1
    i = u >> 1; inext = (u + 1) >> 1; ip = (u - 1) >> 1
    Sc, Sn = S[cur], S[nx]
    ex = [f'v_exp_f32 v{Sc+k}, v{Sc+k}' for k in range(16)]
    cv = [f'v_cvt_pk_bf16_f32 v{P+k}, v{Sc+2*k}, v{Sc+2*k+1}' for k in range(8)]
    qk = QK(Sn, KB[inext & 1], Q[nx], vr(NEGM[nx],16))
    pv0 = f'v_mfma_f32_32x32x16_bf16 {vr(O[cur],16)}, {vr(VB[i & 1])}, {vr(P)}, {vr(O[cur],16)}'
    l0 = f'v_mfma_f32_16x16x32_bf16 {vr(LS[cur])}, {vr(ONES)}, {vr(P)}, {vr(LS[cur])}'
    pv1p = f'v_mfma_f32_32x32x16_bf16 {vr(O[nx],16)}, {vr(VB[ip & 1]+4)}, {vr(P+4)}, {vr(O[nx],16)}'
    l1p = f'v_mfma_f32_16x16x32_bf16 {vr(LS[nx])}, {vr(ONES)}, {vr(P+4)}, {vr(LS[nx])}'
    j = i + 1
    reg, off = (VCUR, j*4096) if j < 4 else (VNXT, 0)
    if cur == 0: rd = [f'ds_read_b128 {vr(KB[j & 1])}, v{reg} offset:{off}', f'ds_read_b128 {vr(KB[j & 1]+4)}, v{reg} offset:{off+1024}']
    else: rd = [f'ds_read_b128 {vr(VB[j & 1])}, v{reg} offset:{off+2048}', f'ds_read_b128 {vr(VB[j & 1]+4)}, v{reg} offset:{off+3072}']
    dm = []; pre = []; acc = []; ld = []
    if u == 6:
        pre = ['s_waitcnt vmcnt(0)', 's_barrier']
        acc = [f'v_pk_add_f32 {vr(KVA,2)}, {vr(KVA,2)}, {vr(KVP_R,2)}', f'v_pk_add_f32 {vr(KVA+2,2)}, {vr(KVA+2,2)}, {vr(KVP_R+2,2)}']
        lab = a.label('K2_nodma')
        dm = ['s_cmp_gt_u32 s27, 2', f's_cbranch_scc0 {lab}'] + dma_stage() + [f'{lab}:']
    if u == 0:
        ld = [f'buffer_load_dwordx4 {vr(KVP_R)}, v{V16}, s[12:15], s58 offen', 's_add_u32 s58, s58, 8192']
    sched = OPT.get('sched', 1)
    if sched == 1:
        seq = ['s_waitcnt lgkmcnt(0)'] + pre
        seq += [qk[0]] + ex[0:4] + [pv1p] + dm + ld + ex[4:8] + [l1p] + rd + cv[0:4] + acc
        seq += [qk[1]] + ex[8:12] + [pv0] + ex[12:16] + [l0] + cv[4:8]
    elif sched == 2:
        seq = ['s_waitcnt lgkmcnt(0)'] + pre
        seq += [qk[0]] + rd + ex[0:4] + [pv1p] + dm + ld + ex[4:8] + [l1p] + cv[0:4] + acc
        seq += [qk[1]] + ex[8:12] + [pv0] + ex[12:16] + [l0] + cv[4:8]
    elif sched == 3:
        seq = ['s_waitcnt lgkmcnt(0)'] + pre
        seq += [qk[0]] + ex[0:3] + [l1p] + rd + ex[3:5] + [pv1p] + dm + ld + ex[5:8] + cv[0:4] + acc
        seq += [qk[1]] + ex[8:11] + [l0] + ex[11:13] + [pv0] + ex[13:16] + cv[4:8]
    for x in seq: a(x)

def rowmax(a, dst, regs, tmp, init=None):
    r = list(regs)
    if init is None:
        a(f'v_max3_f32 v{dst}, v{r[0]}, v{r[1]}, v{r[2]}'); r = r[3:]
    while len(r) >= 2:
        a(f'v_max3_f32 v{dst}, v{dst}, v{r[0]}, v{r[1]}'); r = r[2:]
    if r: a(f'v_max_f32 v{dst}, v{dst}, v{r[0]}')

def gen_k2(a, name):
    kernel_begin(a, name)
    a('s_cmp_ge_u32 s2, 256'); a('s_cbranch_scc1 K2_end')
    stamp(a, 0)
    a('s_load_dwordx2 s[40:41], s[0:1], 16')
    a('s_load_dwordx2 s[50:51], s[0:1], 80')
    a('s_load_dwordx2 s[42:43], s[0:1], 24'); a('s_load_dwordx2 s[44:45], s[0:1], 48')
    a('s_and_b32 s3, s2, 7'); a('s_lshr_b32 s34, s2, 3')
    a('s_lshl_b32 s22, s3, 2'); a('s_and_b32 s35, s34, 3'); a('s_add_u32 s22, s22, s35')
    a('s_lshr_b32 s21, s34, 2')
    a('v_lshrrev_b32 v4, 6, v0'); a(f'v_and_b32 v{VL}, 63, v0')
    a('v_readfirstlane_b32 s20, v4')
    a(f'v_lshlrev_b32 v{V16}, 4, v{VL}')
    a('s_lshr_b32 s23, s20, 2')
    a('s_and_b32 s34, s20, 3'); a('s_lshl_b32 s34, s34, 1'); a('s_lshl_b32 s30, s21, 3'); a('s_add_u32 s30, s30, s34')
    a('s_lshl_b32 s59, s22, 17'); a('s_lshl_b32 s34, s30, 11'); a('s_add_u32 s59, s59, s34')
    a('s_add_u32 s30, s30, s23')
    a('s_lshl_b32 s31, s23, 11'); a('s_add_u32 s31, s31, s59')
    a('s_lshl_b32 s24, s22, 18'); a('s_lshl_b32 s34, s20, 12'); a('s_add_u32 s24, s24, s34')
    a('s_lshl_b32 s25, s20, 12')
    a('s_waitcnt lgkmcnt(0)')
    srd(a, 12, 50, 51, ws_size())
    for x in dma_stage(): a(x)
    a(f's_add_u32 s34, s59, {WS_QB}')
    for q in range(2):
        a(f'buffer_load_dwordx4 {vr(Q[q])}, v{V16}, s[12:15], s34 offen offset:{q*2048}'); a(f'buffer_load_dwordx4 {vr(Q[q]+4)}, v{V16}, s[12:15], s34 offen offset:{q*2048+1024}')
    srd(a, 16, 40, 41, 65536)
    a('s_cmp_ge_u32 s20, 2'); a('s_cbranch_scc1 K2_nowp')
    a('s_lshl_b32 s34, s20, 10'); a(f's_add_u32 m0, s34, {WPH}'); a('s_lshl_b32 s35, s22, 11'); a('s_add_u32 s35, s35, s34')
    a(f'buffer_load_dwordx4 v{V16}, s[16:19], s35 offen lds')
    a('K2_nowp:')
    a('s_lshr_b32 s34, s30, 2'); a('s_lshl_b32 s34, s34, 6'); a('s_add_u32 s34, s34, s22'); a('s_lshl_b32 s34, s34, 2')
    a('s_and_b32 s35, s30, 3'); a('s_add_u32 s34, s34, s35'); a('s_lshl_b32 s29, s34, 11'); a(f's_add_u32 s29, s29, {WS_O}')
    a(f'v_lshrrev_b32 v4, 4, v{VL}'); a(f'v_lshrrev_b32 v5, 2, v{VL}'); a('v_xor_b32 v4, v4, v5'); a('v_and_b32 v4, 1, v4')
    a('v_cmp_eq_u32 vcc, 0, v4'); a('v_mov_b32 v5, 0x3f803f80'); a('v_mov_b32 v6, 0')
    for r in range(4): a(f'v_cndmask_b32 v{ONES+r}, v6, v5, vcc')
    a('v_mov_b32 v4, 0'); a('v_mov_b32 v5, 0'); a('v_mov_b32 v7, 0')
    a(f'v_mov_b32 v{VCUR}, {ZERO}')
    a(f'ds_write_b128 v{VCUR}, v[4:7]')
    for q in range(2):
        for r in range(16): a(f'v_mov_b32 v{O[q]+r}, 0')
        for r in range(4): a(f'v_mov_b32 v{LS[q]+r}, 0')
    for r in range(4): a(f'v_mov_b32 v{P+4+r}, 0'); a(f'v_mov_b32 v{VB[1]+4+r}, 0'); a(f'v_mov_b32 v{KVA+r}, 0')
    a('s_lshl_b32 s34, s23, 14')
    a(f'v_add_u32 v{VCUR}, s34, v{V16}'); a(f'v_add_u32 v{VNXT}, {STG}, v{VCUR}'); a(f's_add_u32 s26, s34, {STG}')
    a('s_lshl_b32 s58, s22, 16'); a('s_lshl_b32 s35, s20, 10'); a('s_add_u32 s58, s58, s35'); a(f's_add_u32 s58, s58, {WS_KVP}')
    a('s_waitcnt vmcnt(0) lgkmcnt(0)'); a('s_barrier')
    stamp(a, 1)
    a(f'ds_read_b128 {vr(KB[1])}, v{V16} offset:0'); a(f'ds_read_b128 {vr(KB[1]+4)}, v{V16} offset:1024')
    a(f'ds_read_b128 {vr(KB[0])}, v{VCUR} offset:0'); a(f'ds_read_b128 {vr(KB[0]+4)}, v{VCUR} offset:1024')
    a(f'ds_read_b128 {vr(VB[0])}, v{VCUR} offset:2048'); a(f'ds_read_b128 {vr(VB[0]+4)}, v{VCUR} offset:3072')
    a('s_waitcnt lgkmcnt(4)')
    for q in range(2):
        for x in QK(S[q], KB[1], Q[q], '0'): a(x)
    for x in dma_stage(): a(x)
    a('s_nop 1')
    rowmax(a, 4, range(S[0], S[0]+16), 6); rowmax(a, 5, range(S[1], S[1]+16), 7)
    a('v_mov_b32 v6, v4'); a('v_mov_b32 v7, v5'); a('s_nop 0')
    a('v_permlane32_swap_b32 v4, v6'); a('v_permlane32_swap_b32 v5, v7')
    a('v_max_f32 v4, v4, v6'); a('v_max_f32 v5, v5, v7')
    a(f's_mov_b32 s34, {fhex(-CSHIFT)}')
    a('v_sub_f32 v4, s34, v4'); a('v_sub_f32 v5, s34, v5')
    for r in range(16): a(f'v_mov_b32 v{NEGM[0]+r}, v4')
    a('s_waitcnt lgkmcnt(0)'); a('s_nop 0')
    for x in QK(S[0], KB[0], Q[0], vr(NEGM[0],16)): a(x)
    for r in range(16): a(f'v_mov_b32 v{NEGM[1]+r}, v5')
    a(f'v_lshrrev_b32 v4, 3, v{VL}'); a('v_lshlrev_b32 v4, 8, v4'); a(f'v_and_b32 v5, 7, v{VL}'); a('v_lshl_add_u32 v4, v5, 2, v4')
    a('s_lshl_b32 s34, s22, 11'); a('s_lshl_b32 s35, s20, 5'); a('s_add_u32 s34, s34, s35'); a(f's_add_u32 s34, s34, {WS_ZP}')
    a(f'buffer_load_dword v{ZR}, v4, s[12:15], s34 offen')
    a(f's_add_u32 s34, s31, {WS_QA}')
    a(f'buffer_load_dwordx4 {vr(QA_R)}, v{V16}, s[12:15], s34 offen'); a(f'buffer_load_dwordx4 {vr(QA_R+4)}, v{V16}, s[12:15], s34 offen offset:1024')
    a(f'v_and_b32 v4, 31, v{VL}'); a('v_lshlrev_b32 v4, 2, v4'); a('s_lshl_b32 s34, s30, 7'); a(f's_add_u32 s34, s34, {WS_G}')
    a(f'buffer_load_dword v{GR}, v4, s[12:15], s34 offen')
    a('s_cmp_lt_u32 s20, 4')
    a('s_cselect_b32 s52, s42, s44'); a('s_cselect_b32 s53, s43, s45'); a('s_mov_b32 s54, 2097152'); a('s_mov_b32 s55, 0x20000')
    a('s_and_b32 s34, s20, 3'); a('s_lshl_b32 s35, s2, 2'); a('s_add_u32 s34, s34, s35'); a('s_lshl_b32 s34, s34, 11')
    a(f'v_lshlrev_b32 v4, 5, v{VL}')
    a(f'buffer_load_dword v{ZR+2}, v4, s[52:55], s34 offen')
    a('s_mov_b32 s27, 8')
    stamp(a, 2)
    a('K2_loop:')
    for u in range(8): tile(a, u)
    a(f'v_mov_b32 v{VCUR}, v{VNXT}')
    for x in ring(26, STG, 3*STG): a(x)
    a(f'v_add_u32 v{VNXT}, s26, v{V16}')
    a('s_sub_u32 s27, s27, 1'); a('s_cmp_lg_u32 s27, 0'); a('s_cbranch_scc1 K2_loop')
    stamp(a, 3)
    a(f'v_mfma_f32_32x32x16_bf16 {vr(O[1],16)}, {vr(VB[1]+4)}, {vr(P+4)}, {vr(O[1],16)}')
    a(f'v_mfma_f32_16x16x32_bf16 {vr(LS[1])}, {vr(ONES)}, {vr(P+4)}, {vr(LS[1])}')
    R = KVA
    a(f'v_cvt_pk_bf16_f32 v{R}, v{R}, v{R+1}'); a(f'v_cvt_pk_bf16_f32 v{R+1}, v{R+2}, v{R+3}')
    a('s_lshr_b32 s34, s20, 1'); a('s_lshl_b32 s34, s34, 10'); a('s_and_b32 s35, s20, 1'); a('s_lshl_b32 s35, s35, 3'); a('s_add_u32 s34, s34, s35')
    a(f's_add_u32 s34, s34, {AFR}'); a(f'v_add_u32 v4, s34, v{V16}')
    a(f'ds_write_b64 v4, {vr(R,2)}')
    a(f'v_add_f32_dpp v{ZR}, v{ZR}, v{ZR} row_ror:8 row_mask:0xf bank_mask:0xf')
    a('s_nop 0')
    a(f'v_mov_b32 v5, v{ZR}'); a('s_nop 1'); a(f'v_permlane16_swap_b32 v{ZR}, v5'); a(f'v_add_f32 v{ZR}, v{ZR}, v5')
    a(f'v_mov_b32 v5, v{ZR}'); a('s_nop 1'); a(f'v_permlane32_swap_b32 v{ZR}, v5'); a(f'v_add_f32 v{ZR}, v{ZR}, v5')
    a(f'v_cvt_pk_bf16_f32 v{ZR}, v{ZR}, v{ZR}')
    a('s_lshr_b32 s34, s20, 1'); a('s_lshl_b32 s34, s34, 5'); a('s_and_b32 s35, s20, 1'); a('s_lshl_b32 s35, s35, 3'); a('s_add_u32 s34, s34, s35')
    a(f's_add_u32 s34, s34, {ZT}')
    a(f'v_bfe_u32 v5, v{VL}, 2, 1'); a('v_lshlrev_b32 v5, 4, v5'); a(f'v_and_b32 v6, 3, v{VL}'); a('v_lshl_add_u32 v5, v6, 1, v5'); a('v_add_u32 v5, s34, v5')
    a(f'ds_write_b16 v5, v{ZR}')
    a(f's_mul_i32 s34, s20, 4352'); a(f's_add_u32 s34, s34, {XCH}'); a(f'v_add_u32 v6, s34, v{V16}')
    a(f'v_lshlrev_b32 v7, 2, v{VL}'); a('v_add_u32 v7, s34, v7')
    a('s_cmp_eq_u32 s23, 0'); a('s_cbranch_scc0 K2_x1')
    for j in range(4): a(f'ds_write_b128 v6, {vr(O[1]+4*j)} offset:{j*1024}')
    a(f'ds_write_b32 v7, v{LS[1]} offset:4096')
    a('s_branch K2_xj')
    a('K2_x1:')
    for j in range(4): a(f'ds_write_b128 v6, {vr(O[0]+4*j)} offset:{j*1024}')
    a(f'ds_write_b32 v7, v{LS[0]} offset:4096')
    a('s_waitcnt lgkmcnt(0)')
    for r in range(16): a(f'v_mov_b32 v{O[0]+r}, v{O[1]+r}')
    a(f'v_mov_b32 v{LS[0]}, v{LS[1]}')
    a('K2_xj:')
    a('s_xor_b32 s35, s20, 4'); a(f's_mul_i32 s35, s35, 4352'); a(f's_add_u32 s35, s35, {XCH}')
    a(f'v_add_u32 v6, s35, v{V16}'); a(f'v_lshlrev_b32 v7, 2, v{VL}'); a('v_add_u32 v7, s35, v7')
    a('s_waitcnt lgkmcnt(0)'); a('s_barrier')
    for j in range(4): a(f'ds_read_b128 {vr(S[1]+4*j)}, v6 offset:{j*1024}')
    a(f'ds_read_b32 v4, v7 offset:4096')
    KVF = 56; ZF = 72; WF = 24
    a(f'v_add_u32 v7, {AFR}, v{V16}')
    for fs in range(4): a(f'ds_read_b128 {vr(KVF+4*fs)}, v7 offset:{fs*1024}')
    a(f'v_lshrrev_b32 v6, 5, v{VL}'); a('v_lshlrev_b32 v6, 4, v6'); a(f'v_add_u32 v6, {ZT}, v6')
    a(f'v_cmp_eq_u32 vcc, 0, v{ONES}')
    a('s_waitcnt lgkmcnt(4)')
    Oc = O[0]; L0 = LS[0]
    for i in range(0, 16, 2): a(f'v_pk_add_f32 {vr(Oc+i,2)}, {vr(Oc+i,2)}, {vr(S[1]+i,2)}')
    a(f'v_add_f32 v{L0}, v{L0}, v4')
    for fs in range(4):
        a(f'v_add_u32 v7, {fs*32}, v6'); a(f'v_mov_b32 v{ZF+4*fs}, {ZERO}'); a(f'v_cndmask_b32 v7, v7, v{ZF+4*fs}, vcc')
        a(f'ds_read_b128 {vr(ZF+4*fs)}, v7')
    a(f'v_lshrrev_b32 v6, 5, v{VL}'); a(f'v_bfe_u32 v7, v{VL}, 2, 2'); a('v_lshl_add_u32 v6, v6, 2, v7'); a('v_lshlrev_b32 v6, 6, v6')
    a(f'v_bfe_u32 v7, v{VL}, 4, 1'); a('v_lshl_add_u32 v6, v7, 5, v6'); a(f'v_and_b32 v7, 3, v{VL}'); a('v_lshl_add_u32 v6, v7, 3, v6'); a(f'v_add_u32 v6, {WPH}, v6')
    for s in range(2):
        for jj in range(2): a(f'ds_read_b64_tr_b16 {vr(WF+4*s+2*jj,2)}, v6 offset:{s*512+jj*1024}')
    a(f'v_add_f32_e64 v4, |v{Oc}|, |v{Oc+1}|'); a(f'v_add_f32_e64 v5, |v{Oc+2}|, |v{Oc+3}|')
    for i in range(4, 16, 2):
        a(f'v_add_f32_e64 v4, v4, |v{Oc+i}|'); a(f'v_add_f32_e64 v5, v5, |v{Oc+i+1}|')
    a('v_add_f32 v4, v4, v5')
    a(f's_mov_b32 s34, {fhex(2.0**110)}'); a(f's_mov_b32 s35, {fhex(2.0**124)}')
    a(f'v_cmp_ngt_f32 s[36:37], s34, v{L0}')
    a('v_cmp_ngt_f32 s[38:39], s35, v4')
    a(f's_mov_b32 s34, {fhex(2.0**-110)}')
    a('v_cmp_nlt_f32 vcc, s34, v4')
    a('s_nop 1')
    a('s_or_b64 s[36:37], s[36:37], s[38:39]'); a('s_or_b64 vcc, vcc, s[36:37]')
    if OPT.get('forcefb'): a('s_mov_b64 vcc, 1')
    a('s_cbranch_vccnz K2_fallback')
    a('K2_fin:')
    a(f'v_rcp_f32 v4, v{L0}'); a(f'v_sub_f32 v5, 1.0, v{GR}'); a('s_nop 0'); a('v_mul_f32 v4, v4, v5')
    for i in range(16): a(f'v_mul_f32 v{Oc+i}, v4, v{Oc+i}')
    for i in range(8): a(f'v_cvt_pk_bf16_f32 v{P+i}, v{Oc+2*i}, v{Oc+2*i+1}')
    a(f's_add_u32 s34, s29, {32*4*2048}')
    a(f'buffer_store_dwordx4 {vr(P)}, v{V16}, s[12:15], s34 offen'); a(f'buffer_store_dwordx4 {vr(P+4)}, v{V16}, s[12:15], s34 offen offset:1024')
    PQ = S[0]; E = (S[0], S[1])
    a('s_waitcnt lgkmcnt(0)')
    a(f'v_mfma_f32_32x32x16_bf16 {vr(PQ,16)}, {vr(WF)}, {vr(QA_R)}, 0')
    a(f'v_mfma_f32_32x32x16_bf16 {vr(PQ,16)}, {vr(WF+4)}, {vr(QA_R+4)}, {vr(PQ,16)}')
    a(f's_mov_b32 s60, {fhex(LOG2E)}'); a(f's_mov_b32 s61, {fhex(-LOG2E)}')
    a('s_nop 7'); a('s_nop 1')
    a(f'v_max3_f32 v4, v{PQ}, v{PQ+1}, v{PQ+2}'); a(f'v_min3_f32 v5, v{PQ}, v{PQ+1}, v{PQ+2}')
    for i in range(3, 15, 2):
        a(f'v_max3_f32 v4, v4, v{PQ+i}, v{PQ+i+1}'); a(f'v_min3_f32 v5, v5, v{PQ+i}, v{PQ+i+1}')
    a(f'v_max_f32 v4, v4, v{PQ+15}'); a(f'v_min_f32 v5, v5, v{PQ+15}')
    a('v_mov_b32 v6, v4'); a('v_mov_b32 v7, v5'); a('s_nop 0')
    a('v_permlane32_swap_b32 v4, v6'); a('v_permlane32_swap_b32 v5, v7')
    a('v_max_f32 v4, v4, v6'); a('v_min_f32 v5, v5, v7')
    a('v_mul_f32 v4, s61, v4'); a('v_mul_f32 v5, s60, v5')
    for i in range(16): a(f'v_fma_f32 v{E[1]+i}, v{PQ+i}, s61, v5')
    for i in range(16): a(f'v_fma_f32 v{E[0]+i}, v{PQ+i}, s60, v4')
    for sg in (1, 0):
        for i in range(16): a(f'v_exp_f32 v{E[sg]+i}, v{E[sg]+i}')
    EP = (P, 32)
    a('s_nop 0')
    for sg in (1, 0):
        for i in range(8): a(f'v_cvt_pk_bf16_f32 v{EP[sg]+i}, v{E[sg]+2*i}, v{E[sg]+2*i+1}')
    NUM = (S[0], S[1]); DEN = (40, 44); SUM = (48, 52)
    a('s_nop 1')
    for sg in (1, 0):
        for s in range(2):
            fs = sg*2 + s
            a(f'v_mfma_f32_32x32x16_bf16 {vr(NUM[sg],16)}, {vr(KVF+4*fs)}, {vr(EP[sg]+4*s)}, {"0" if s == 0 else vr(NUM[sg],16)}')
            a(f'v_mfma_f32_16x16x32_bf16 {vr(DEN[sg])}, {vr(ZF+4*fs)}, {vr(EP[sg]+4*s)}, {"0" if s == 0 else vr(DEN[sg])}')
            a(f'v_mfma_f32_16x16x32_bf16 {vr(SUM[sg])}, {vr(ONES)}, {vr(EP[sg]+4*s)}, {"0" if s == 0 else vr(SUM[sg])}')
    a('s_nop 7')
    a(f'v_rcp_f32 v4, v{SUM[0]}'); a(f'v_rcp_f32 v5, v{SUM[1]}'); a('s_nop 0')
    a(f'v_mul_f32 v6, v{DEN[0]}, v4'); a(f'v_fmac_f32 v6, v{DEN[1]}, v5'); a(f'v_add_f32 v6, {fhex(1e-6)}, v6')
    a('v_rcp_f32 v6, v6'); a('s_nop 0'); a(f'v_mul_f32 v6, v6, v{GR}')
    a('v_mul_f32 v4, v4, v6'); a('v_mul_f32 v5, v5, v6')
    for i in range(16): a(f'v_mul_f32 v{NUM[0]+i}, v4, v{NUM[0]+i}')
    for i in range(16): a(f'v_fmac_f32 v{NUM[0]+i}, v5, v{NUM[1]+i}')
    for i in range(8): a(f'v_cvt_pk_bf16_f32 v{56+i}, v{NUM[0]+2*i}, v{NUM[0]+2*i+1}')
    a(f'buffer_store_dwordx4 {vr(56)}, v{V16}, s[12:15], s29 offen'); a(f'buffer_store_dwordx4 {vr(60)}, v{V16}, s[12:15], s29 offen offset:1024')
    stamp(a, 4)
    a('s_waitcnt vmcnt(0)')
    stamp_flush(a, 5, 1, 12, 20, 216)
    a('s_endpgm')
    a('K2_fallback:')
    a(f's_add_u32 s34, s31, {WS_QB}')
    a(f'buffer_load_dwordx4 {vr(Q[0])}, v{V16}, s[12:15], s34 offen'); a(f'buffer_load_dwordx4 {vr(Q[0]+4)}, v{V16}, s[12:15], s34 offen offset:1024')
    a('s_lshl_b32 s24, s22, 18'); a('s_mov_b32 s27, 64')
    a('v_mov_b32 v4, 0xff800000')
    a('K2_fbl:')
    a(f'buffer_load_dwordx4 {vr(FK)}, v{V16}, s[12:15], s24 offen'); a(f'buffer_load_dwordx4 {vr(FK+4)}, v{V16}, s[12:15], s24 offen offset:1024')
    a('s_waitcnt vmcnt(0)')
    for x in QK(S[0], FK, Q[0], '0'): a(x)
    a('s_nop 7'); a('s_nop 3')
    rowmax(a, 4, range(S[0], S[0]+16), 5, init=True)
    a('s_add_u32 s24, s24, 4096'); a('s_sub_u32 s27, s27, 1'); a('s_cmp_lg_u32 s27, 0'); a('s_cbranch_scc1 K2_fbl')
    a('v_mov_b32 v5, v4'); a('s_nop 1'); a('v_permlane32_swap_b32 v4, v5'); a('v_max_f32 v4, v4, v5')
    for r in range(16): a(f'v_sub_f32 v{FM+r}, 0, v4'); a(f'v_mov_b32 v{Oc+r}, 0')
    for r in range(4): a(f'v_mov_b32 v{L0+r}, 0')
    a('s_lshl_b32 s24, s22, 18'); a('s_mov_b32 s27, 64')
    a('K2_fb2:')
    a(f'buffer_load_dwordx4 {vr(FK)}, v{V16}, s[12:15], s24 offen'); a(f'buffer_load_dwordx4 {vr(FK+4)}, v{V16}, s[12:15], s24 offen offset:1024')
    a(f'buffer_load_dwordx4 {vr(FV)}, v{V16}, s[12:15], s24 offen offset:2048'); a(f'buffer_load_dwordx4 {vr(FV+4)}, v{V16}, s[12:15], s24 offen offset:3072')
    a('s_waitcnt vmcnt(0)')
    for x in QK(S[0], FK, Q[0], vr(FM,16)): a(x)
    a('s_nop 7'); a('s_nop 3')
    for k in range(16): a(f'v_exp_f32 v{S[0]+k}, v{S[0]+k}')
    a('s_nop 0')
    for k in range(8): a(f'v_cvt_pk_bf16_f32 v{P+k}, v{S[0]+2*k}, v{S[0]+2*k+1}')
    a('s_nop 1')
    for s in range(2):
        a(f'v_mfma_f32_32x32x16_bf16 {vr(Oc,16)}, {vr(FV+4*s)}, {vr(P+4*s)}, {vr(Oc,16)}')
        a(f'v_mfma_f32_16x16x32_bf16 {vr(L0)}, {vr(ONES)}, {vr(P+4*s)}, {vr(L0)}')
    a('s_add_u32 s24, s24, 4096'); a('s_sub_u32 s27, s27, 1'); a('s_cmp_lg_u32 s27, 0'); a('s_cbranch_scc1 K2_fb2')
    a('s_nop 7'); a('s_nop 7')
    a('s_branch K2_fin')
    a('K2_end:')
    a('s_endpgm')
```

```python
from common import *
import common
OPT = {}
STG = 32768
AFR = 3*STG
WPH = AFR + 4096
ZT = WPH + 2048
ZERO = ZT + 128
LSX = 114688
OX = 131072
K23_LDS = 163840
K23_VGPR = 256
CSHIFT = 80.0
SPIN = 4000
VL = 0; V16 = 1; VCUR = 2; VNXT = 3
Q = (8, 16); NEGM = (24, 40); KB = (56, 64); VB = (72, 80); S = (88, 104); P = 120; O = (128, 144); LS = (160, 164); ONES = 168
VO = 172; VWD = 173; VR0 = 174; VR1 = 175; ZR = 176; GR = 177; FLG = 178; VFO = 179; QA_R = 180
KVP = 192
FK = 56; FV = 72; FM = 24
WF3 = (24, 40); ACC = 56; OF = 192
NK = 32

class VM:
    def __init__(s): s.ops = []
    def issue(s, tag): s.ops.append(tag)
    def drain(s): s.ops = []
    def cnt(s, tags):
        idx = [i for i, t in enumerate(s.ops) if t in tags]
        if not idx: return None
        return len(s.ops) - 1 - max(idx)

def ring(s, inc, size, t='s34'):
    return [f's_add_u32 s{s}, s{s}, {inc}', f's_sub_u32 {t}, s{s}, {size}', f's_min_u32 s{s}, s{s}, {t}']
def QK(Sd, K, Qr, C):
    return [f'v_mfma_f32_32x32x16_bf16 {vr(Sd,16)}, {vr(K)}, {vr(Qr)}, {C}',
            f'v_mfma_f32_32x32x16_bf16 {vr(Sd,16)}, {vr(K+4)}, {vr(Qr+4)}, {vr(Sd,16)}']
def hs(): return ' sc1' if OPT.get('hsc') else ''
def dma_stage():
    r = ['s_mov_b32 m0, s25', 's_nop 0']
    for i in range(4): r.append(f'buffer_load_dwordx4 v{V16}, s[12:15], s24 offen offset:{i*1024}{hs()} lds')
    r += ['s_add_u32 s24, s24, 32768'] + ring(25, STG, 3*STG)
    return r

def tile(a, u, pre=(), mid=(), noqk=False, nord=False):
    cur = u & 1; nx = cur ^ 1
    i = u >> 1; inext = (u + 1) >> 1; ip = (u - 1) >> 1
    Sc, Sn = S[cur], S[nx]
    ex = [f'v_exp_f32 v{Sc+k}, v{Sc+k}' for k in range(16)]
    cv = [f'v_cvt_pk_bf16_f32 v{P+k}, v{Sc+2*k}, v{Sc+2*k+1}' for k in range(8)]
    qk = QK(Sn, KB[inext & 1], Q[nx], vr(NEGM[nx],16))
    pv0 = f'v_mfma_f32_32x32x16_bf16 {vr(O[cur],16)}, {vr(VB[i & 1])}, {vr(P)}, {vr(O[cur],16)}'
    l0 = f'v_mfma_f32_16x16x32_bf16 {vr(LS[cur])}, {vr(ONES)}, {vr(P)}, {vr(LS[cur])}'
    pv1p = f'v_mfma_f32_32x32x16_bf16 {vr(O[nx],16)}, {vr(VB[ip & 1]+4)}, {vr(P+4)}, {vr(O[nx],16)}'
    l1p = f'v_mfma_f32_16x16x32_bf16 {vr(LS[nx])}, {vr(ONES)}, {vr(P+4)}, {vr(LS[nx])}'
    j = i + 1
    reg, off = (VCUR, j*4096) if j < 4 else (VNXT, 0)
    if cur == 0: rd = [f'ds_read_b128 {vr(KB[j & 1])}, v{reg} offset:{off}', f'ds_read_b128 {vr(KB[j & 1]+4)}, v{reg} offset:{off+1024}']
    else: rd = [f'ds_read_b128 {vr(VB[j & 1])}, v{reg} offset:{off+2048}', f'ds_read_b128 {vr(VB[j & 1]+4)}, v{reg} offset:{off+3072}']
    if nord: rd = []
    if noqk: qk = [[], []]
    else: qk = [[qk[0]], [qk[1]]]
    seq = ['s_waitcnt lgkmcnt(0)'] + list(pre)
    seq += qk[0] + ex[0:3] + [l1p] + rd + ex[3:5] + [pv1p] + list(mid) + ex[5:8] + cv[0:4]
    seq += qk[1] + ex[8:11] + [l0] + ex[11:13] + [pv0] + ex[13:16] + cv[4:8]
    for x in seq: a(x)

def iter_end(a):
    a(f'v_mov_b32 v{VCUR}, v{VNXT}')
    for x in ring(26, STG, 3*STG): a(x)
    a(f'v_add_u32 v{VNXT}, s26, v{V16}')

SYNC = ['s_waitcnt vmcnt(0)', 's_barrier']
def iteration(a, pre6=None, mid=None, last=False):
    mid = mid or {}
    for u in range(8):
        tile(a, u, pre=(pre6 if (u == 6 and pre6 is not None) else ()), mid=mid.get(u, ()), noqk=(last and u == 7), nord=(last and u >= 6))
    if not last: iter_end(a)

def rowmax(a, dst, regs, tmp, init=None):
    r = list(regs)
    if init is None:
        a(f'v_max3_f32 v{dst}, v{r[0]}, v{r[1]}, v{r[2]}'); r = r[3:]
    while len(r) >= 2:
        a(f'v_max3_f32 v{dst}, v{dst}, v{r[0]}, v{r[1]}'); r = r[2:]
    if r: a(f'v_max_f32 v{dst}, v{dst}, v{r[0]}')

def flag_store(soff):
    return ['v_mov_b32 v4, 1', 's_mov_b64 exec, 1', f'buffer_store_dword v4, off, s[12:15], {soff} sc1', 's_mov_b64 exec, -1']
def flag_load(soff):
    return f'buffer_load_dword v{FLG}, v{VFO}, s[12:15], {soff} offen sc1'
def spin_path(a, name, load, reg, cntreg, pre=()):
    a(f'{name}:')
    for x in pre: a(x)
    a('s_mov_b32 s56, 0')
    a(f'{name}_l:')
    a(load)
    a('s_add_u32 s56, s56, 1')
    if common.STAMP: a(f's_add_u32 s{cntreg}, s{cntreg}, 1')
    a('s_waitcnt vmcnt(0)')
    a(f'v_cmp_ne_u32 vcc, 1, v{reg}')
    a(f's_cmp_ge_u32 s56, {SPIN}'); a(f's_cbranch_scc1 {name}_b')
    a('s_nop 1')
    a(f's_cbranch_vccnz {name}_l')
    a(f's_branch {name}_b')

def acc(tb, nb): return ACC + (tb*4 + nb)*4
def dma_w(n):
    srd_ = 's[4:7]' if n < 16 else 's[8:11]'
    adv = 's_add_u32 s67, s67, 131072' if n != 15 else f's_sub_u32 s67, s67, {15*131072}'
    return [f's_add_u32 m0, s66, {(n & 15)*4096}', [f'buffer_load_dwordx4 v{VWD}, {srd_}, s67 offen lds', adv]]
def load_o(n):
    r = OF + (n & 7)*8
    return [f'buffer_load_dwordx4 {vr(r)}, v{VO}, s[12:15], s68 offen sc1', f'buffer_load_dwordx4 {vr(r+4)}, v{VO}, s[12:15], s68 offen offset:256 sc1', 's_add_u32 s68, s68, 16384']
def reads(n):
    st = WF3[n & 1]; out = []
    for nb in range(4):
        for jj in range(2):
            out.append(f'ds_read_b64_tr_b16 {vr(st+nb*4+jj*2,2)}, v{VR0 + (nb & 1)} offset:{(n & 15)*4096 + jj*512 + (nb >> 1)*256}')
    return out
def W_lines(vm, n):
    d = dma_w(n); vm.issue(f'W{n}')
    return [d[0], 's_nop 0'] + d[1]
def o_lines(vm, n):
    vm.issue(f'o{n}a'); vm.issue(f'o{n}b')
    return load_o(n)

def a_block(a):
    WF = KB[1]; PQ = 192; E = (192, 208); EP = (112, 104); NUM = (192, 208); DEN = (180, 184); SUM = (120, 80); KVF = 224; ZF = 240
    a(f'v_lshrrev_b32 v6, 5, v{VL}'); a(f'v_bfe_u32 v7, v{VL}, 2, 2'); a('v_lshl_add_u32 v6, v6, 2, v7'); a('v_lshlrev_b32 v6, 6, v6')
    a(f'v_bfe_u32 v7, v{VL}, 4, 1'); a('v_lshl_add_u32 v6, v7, 5, v6'); a(f'v_and_b32 v7, 3, v{VL}'); a('v_lshl_add_u32 v6, v7, 3, v6'); a(f'v_add_u32 v6, {WPH}, v6')
    for s in range(2):
        for jj in range(2): a(f'ds_read_b64_tr_b16 {vr(WF+4*s+2*jj,2)}, v6 offset:{s*512+jj*1024}')
    R = KVP
    for st in (4, 8, 16):
        for b in range(0, 32, 2*st):
            for h in (0, 2): a(f'v_pk_add_f32 {vr(R+b+h,2)}, {vr(R+b+h,2)}, {vr(R+b+st+h,2)}')
    a(f'v_cvt_pk_bf16_f32 v4, v{R}, v{R+1}'); a(f'v_cvt_pk_bf16_f32 v5, v{R+2}, v{R+3}')
    a('s_lshr_b32 s34, s20, 1'); a('s_lshl_b32 s34, s34, 10'); a('s_and_b32 s35, s20, 1'); a('s_lshl_b32 s35, s35, 3'); a('s_add_u32 s34, s34, s35')
    a(f's_add_u32 s34, s34, {AFR}'); a(f'v_add_u32 v6, s34, v{V16}')
    a(f'ds_write_b64 v6, v[4:5]')
    a(f'v_add_f32_dpp v{ZR}, v{ZR}, v{ZR} row_ror:8 row_mask:0xf bank_mask:0xf')
    a('s_nop 0')
    a(f'v_mov_b32 v7, v{ZR}'); a('s_nop 1'); a(f'v_permlane16_swap_b32 v{ZR}, v7'); a(f'v_add_f32 v{ZR}, v{ZR}, v7')
    a(f'v_mov_b32 v7, v{ZR}'); a('s_nop 1'); a(f'v_permlane32_swap_b32 v{ZR}, v7'); a(f'v_add_f32 v{ZR}, v{ZR}, v7')
    a(f'v_cvt_pk_bf16_f32 v{ZR}, v{ZR}, v{ZR}')
    a('s_lshr_b32 s34, s20, 1'); a('s_lshl_b32 s34, s34, 5'); a('s_and_b32 s35, s20, 1'); a('s_lshl_b32 s35, s35, 3'); a('s_add_u32 s34, s34, s35')
    a(f's_add_u32 s34, s34, {ZT}')
    a(f'v_bfe_u32 v7, v{VL}, 2, 1'); a('v_lshlrev_b32 v7, 4, v7'); a(f'v_and_b32 v6, 3, v{VL}'); a('v_lshl_add_u32 v7, v6, 1, v7'); a('v_add_u32 v7, s34, v7')
    a(f'ds_write_b16 v7, v{ZR}')
    a('s_waitcnt lgkmcnt(0)')
    a(f'v_mfma_f32_32x32x16_bf16 {vr(PQ,16)}, {vr(WF)}, {vr(QA_R)}, 0')
    a(f'v_mfma_f32_32x32x16_bf16 {vr(PQ,16)}, {vr(WF+4)}, {vr(QA_R+4)}, {vr(PQ,16)}')
    a('s_barrier')
    a(f'v_add_u32 v7, {AFR}, v{V16}')
    for fs in range(4): a(f'ds_read_b128 {vr(KVF+4*fs)}, v7 offset:{fs*1024}')
    a(f'v_lshrrev_b32 v6, 5, v{VL}'); a('v_lshlrev_b32 v6, 4, v6'); a(f'v_add_u32 v6, {ZT}, v6')
    a(f'v_cmp_eq_u32 vcc, 0, v{ONES}')
    a(f's_mov_b32 s60, {fhex(LOG2E)}'); a(f's_mov_b32 s61, {fhex(-LOG2E)}')
    for fs in range(4):
        a(f'v_add_u32 v7, {fs*32}, v6'); a(f'v_mov_b32 v{ZF+4*fs}, {ZERO}'); a(f'v_cndmask_b32 v7, v7, v{ZF+4*fs}, vcc')
        a(f'ds_read_b128 {vr(ZF+4*fs)}, v7')
    a(f'v_max3_f32 v4, v{PQ}, v{PQ+1}, v{PQ+2}'); a(f'v_min3_f32 v5, v{PQ}, v{PQ+1}, v{PQ+2}')
    for i in range(3, 15, 2):
        a(f'v_max3_f32 v4, v4, v{PQ+i}, v{PQ+i+1}'); a(f'v_min3_f32 v5, v5, v{PQ+i}, v{PQ+i+1}')
    a(f'v_max_f32 v4, v4, v{PQ+15}'); a(f'v_min_f32 v5, v5, v{PQ+15}')
    a('v_mov_b32 v6, v4'); a('v_mov_b32 v7, v5'); a('s_nop 0')
    a('v_permlane32_swap_b32 v4, v6'); a('v_permlane32_swap_b32 v5, v7')
    a('v_max_f32 v4, v4, v6'); a('v_min_f32 v5, v5, v7')
    a('v_mul_f32 v4, s61, v4'); a('v_mul_f32 v5, s60, v5')
    for i in range(16): a(f'v_fma_f32 v{E[1]+i}, v{PQ+i}, s61, v5')
    for i in range(16): a(f'v_fma_f32 v{E[0]+i}, v{PQ+i}, s60, v4')
    for sg in (1, 0):
        for i in range(16): a(f'v_exp_f32 v{E[sg]+i}, v{E[sg]+i}')
    a('s_nop 0')
    for sg in (1, 0):
        for i in range(8): a(f'v_cvt_pk_bf16_f32 v{EP[sg]+i}, v{E[sg]+2*i}, v{E[sg]+2*i+1}')
    a('s_waitcnt lgkmcnt(0)'); a('s_nop 0')
    for sg in (1, 0):
        for s in range(2):
            fs = sg*2 + s
            a(f'v_mfma_f32_32x32x16_bf16 {vr(NUM[sg],16)}, {vr(KVF+4*fs)}, {vr(EP[sg]+4*s)}, {"0" if s == 0 else vr(NUM[sg],16)}')
            a(f'v_mfma_f32_16x16x32_bf16 {vr(DEN[sg])}, {vr(ZF+4*fs)}, {vr(EP[sg]+4*s)}, {"0" if s == 0 else vr(DEN[sg])}')
            a(f'v_mfma_f32_16x16x32_bf16 {vr(SUM[sg])}, {vr(ONES)}, {vr(EP[sg]+4*s)}, {"0" if s == 0 else vr(SUM[sg])}')
    a('s_nop 7')
    a(f'v_rcp_f32 v4, v{SUM[0]}'); a(f'v_rcp_f32 v5, v{SUM[1]}'); a('s_nop 0')
    a(f'v_mul_f32 v6, v{DEN[0]}, v4'); a(f'v_fmac_f32 v6, v{DEN[1]}, v5'); a(f'v_add_f32 v6, {fhex(1e-6)}, v6')
    a('v_rcp_f32 v6, v6'); a('s_nop 0'); a(f'v_mul_f32 v6, v6, v{GR}')
    a('v_mul_f32 v4, v4, v6'); a('v_mul_f32 v5, v5, v6')
    for i in range(16): a(f'v_mul_f32 v{NUM[0]+i}, v4, v{NUM[0]+i}')
    for i in range(16): a(f'v_fmac_f32 v{NUM[0]+i}, v5, v{NUM[1]+i}')
    for i in range(8): a(f'v_cvt_pk_bf16_f32 v{224+i}, v{NUM[0]+2*i}, v{NUM[0]+2*i+1}')
    a(f'buffer_store_dwordx4 {vr(224)}, v{V16}, s[12:15], s29 offen sc1'); a(f'buffer_store_dwordx4 {vr(228)}, v{V16}, s[12:15], s29 offen offset:1024 sc1')

VFO2 = 188; VF8 = 189
def gen_k23(a, name):
    fused = OPT.get('fused')
    SO = (96, 97) if fused else (46, 47)
    stmap = (lambda k: {1: 4, 2: 5, 4: 6, 5: 7}.get(k)) if fused else (lambda k: k)
    if OPT.get('st_map'): stmap = lambda k: OPT['st_map'].get(k)
    elif OPT.get('st_tr'): stmap = lambda k: {1: 7, 10: 4, 11: 5, 12: 6}.get(k)
    elif fused: stmap = lambda k: {1: 4, 2: 5, 4: 6, 5: 7}.get(k)
    def stp(k):
        if stmap(k) is not None: stamp(a, stmap(k))
    AUX = {0: 86, 3: 87, 4: 88, 5: 89, 6: 92} if fused else {0: 86, 1: 87, 2: 88, 3: 89, 4: 92}
    if not fused:
        kernel_begin(a, name)
        a('s_cmp_ge_u32 s2, 256'); a('s_cbranch_scc1 K2_end')
        stamp(a, 0)
        if common.STAMP:
            for r in (86, 87, 88, 89, 92, 93): a(f's_mov_b32 s{r}, 0')
        a('s_load_dwordx2 s[40:41], s[0:1], 16')
        a('s_load_dwordx2 s[50:51], s[0:1], 80')
        a('s_load_dwordx2 s[42:43], s[0:1], 24'); a('s_load_dwordx2 s[44:45], s[0:1], 48'); a('s_load_dwordx2 s[46:47], s[0:1], 64')
    a('s_and_b32 s3, s2, 7'); a('s_lshr_b32 s69, s2, 3')
    a('s_lshl_b32 s22, s3, 2'); a('s_and_b32 s35, s69, 3'); a('s_add_u32 s22, s22, s35')
    a('s_lshr_b32 s21, s69, 2')
    if fused:
        a(f'v_mov_b32 v{VL}, v185')
    else:
        a('v_lshrrev_b32 v4, 6, v0'); a(f'v_and_b32 v{VL}, 63, v0')
        a('v_readfirstlane_b32 s20, v4')
    a(f'v_lshlrev_b32 v{V16}, 4, v{VL}')
    a('s_lshr_b32 s23, s20, 2')
    a('s_and_b32 s65, s20, 3'); a('s_lshl_b32 s34, s65, 1'); a('s_lshl_b32 s30, s21, 3'); a('s_add_u32 s30, s30, s34')
    a('s_lshl_b32 s59, s22, 17'); a('s_lshl_b32 s34, s30, 11'); a('s_add_u32 s59, s59, s34')
    a('s_add_u32 s30, s30, s23')
    a('s_lshl_b32 s31, s23, 11'); a('s_add_u32 s31, s31, s59')
    a('s_lshl_b32 s24, s22, 18'); a('s_lshl_b32 s34, s20, 12'); a('s_add_u32 s24, s24, s34')
    a('s_lshl_b32 s25, s20, 12')
    def first_loads():
        for x in dma_stage(): a(x)
        a(f's_add_u32 s34, s59, {WS_QB}')
        for q in range(2):
            a(f'buffer_load_dwordx4 {vr(Q[q])}, v{V16}, s[12:15], s34 offen offset:{q*2048}{hs()}'); a(f'buffer_load_dwordx4 {vr(Q[q]+4)}, v{V16}, s[12:15], s34 offen offset:{q*2048+1024}{hs()}')
    def wphi_load():
        srd(a, 16, 40, 41, 65536)
        a('s_cmp_ge_u32 s20, 2'); a('s_cbranch_scc1 K2_nowp')
        a('s_lshl_b32 s34, s20, 10'); a(f's_add_u32 m0, s34, {WPH}'); a('s_lshl_b32 s35, s22, 11'); a('s_add_u32 s35, s35, s34')
        a(f'buffer_load_dwordx4 v{V16}, s[16:19], s35 offen lds')
        a('K2_nowp:')
    def zero_area():
        a('v_mov_b32 v4, 0'); a('v_mov_b32 v5, 0'); a('v_mov_b32 v6, 0'); a('v_mov_b32 v7, 0')
        a(f'v_mov_b32 v{FLG}, {ZERO}')
        a(f'ds_write_b128 v{FLG}, v[4:7]')
    if fused:
        a(f'v_and_b32 v4, 7, v{VL}'); a(f'v_lshlrev_b32 v{VF8}, 2, v4')
        a('s_lshr_b32 s34, s22, 1'); a('s_lshl_b32 s100, s34, 7'); a(f's_add_u32 s101, s100, {FL_1A}'); a(f's_add_u32 s100, s100, {FL_1B}')
        a(f'buffer_load_dword v{GR}, v{VF8}, s[12:15], s100 offen sc1')
        a(f'v_add_u32 v5, s101, v{VF8}')
        a(f'v_subrev_u32 v6, 8, v{VL}'); a('v_and_b32 v7, 15, v6'); a('v_lshlrev_b32 v7, 7, v7')
        a('s_lshl_b32 s34, s21, 2'); a(f's_add_u32 s34, s34, {FL_1B}'); a('v_add_u32 v7, s34, v7')
        a('v_cmp_gt_u32 vcc, 16, v6'); a('s_nop 1'); a(f'v_cndmask_b32 v{VFO2}, v5, v7, vcc')
    else:
        a('s_waitcnt lgkmcnt(0)')
        srd(a, 12, 50, 51, ws_size())
        first_loads()
        wphi_load()
    srd(a, 4, 42, 43, 2097152); srd(a, 8, 44, 45, 2097152)
    a('s_lshr_b32 s34, s30, 2'); a('s_lshl_b32 s34, s34, 6'); a('s_add_u32 s34, s34, s22'); a('s_lshl_b32 s34, s34, 2')
    a('s_and_b32 s35, s30, 3'); a('s_add_u32 s34, s34, s35'); a('s_lshl_b32 s29, s34, 11'); a(f's_add_u32 s29, s29, {WS_O}')
    a(f'v_lshrrev_b32 v4, 4, v{VL}'); a(f'v_lshrrev_b32 v5, 2, v{VL}'); a('v_xor_b32 v4, v4, v5'); a('v_and_b32 v4, 1, v4')
    a('v_cmp_eq_u32 vcc, 0, v4'); a('v_mov_b32 v5, 0x3f803f80'); a('v_mov_b32 v6, 0')
    for r in range(4): a(f'v_cndmask_b32 v{ONES+r}, v6, v5, vcc')
    if not fused: zero_area()
    for q in range(2):
        for r in range(16): a(f'v_mov_b32 v{O[q]+r}, 0')
        for r in range(4): a(f'v_mov_b32 v{LS[q]+r}, 0')
    for r in range(4): a(f'v_mov_b32 v{P+4+r}, 0'); a(f'v_mov_b32 v{VB[1]+4+r}, 0')
    a('s_lshl_b32 s34, s23, 14')
    a(f'v_add_u32 v{VCUR}, s34, v{V16}'); a(f'v_add_u32 v{VNXT}, {STG}, v{VCUR}'); a(f's_add_u32 s26, s34, {STG}')
    a('s_lshl_b32 s58, s22, 16'); a('s_lshl_b32 s35, s20, 10'); a('s_add_u32 s58, s58, s35'); a(f's_add_u32 s58, s58, {WS_KVP}')
    a('s_lshl_b32 s34, s22, 11'); a('s_lshl_b32 s35, s20, 5'); a('s_add_u32 s34, s34, s35'); a(f's_add_u32 s48, s34, {WS_ZP}')
    a(f's_add_u32 s49, s31, {WS_QA}')
    a(f's_lshl_b32 s34, s30, {8 if fused else 7}'); a(f's_add_u32 s57, s34, {WS_G}')
    a('s_lshr_b32 s62, s3, 1'); a('s_lshl_b32 s62, s62, 2'); a('s_and_b32 s35, s69, 3'); a('s_add_u32 s62, s62, s35')
    a('s_and_b32 s63, s3, 1'); a('s_lshl_b32 s63, s63, 3'); a('s_lshr_b32 s35, s69, 2'); a('s_add_u32 s63, s63, s35')
    L = VL
    a(f'v_lshrrev_b32 v6, 4, v{L}'); a(f'v_and_b32 v7, 15, v{L}')
    a('v_lshlrev_b32 v4, 9, v6'); a(f'v_lshl_add_u32 v{VO}, v7, 4, v4')
    a(f'v_lshrrev_b32 v4, 5, v{L}'); a('v_lshlrev_b32 v4, 3, v4'); a(f'v_bfe_u32 v5, v{L}, 1, 2'); a('v_add_u32 v4, v4, v5'); a('v_lshlrev_b32 v4, 11, v4')
    a('s_and_b32 s34, s65, 1'); a(f'v_bfe_u32 v5, v{L}, 3, 2'); a('v_xor_b32 v5, s34, v5'); a('v_lshl_add_u32 v4, v5, 5, v4')
    a(f'v_and_b32 v5, 1, v{L}'); a(f'v_lshl_add_u32 v{VWD}, v5, 4, v4')
    a('v_lshlrev_b32 v4, 10, v6'); a('v_and_b32 v5, 1, v6'); a('v_lshl_add_u32 v4, v5, 7, v4')
    a(f'v_bfe_u32 v5, v{L}, 2, 2'); a('v_lshl_add_u32 v4, v5, 5, v4'); a(f'v_and_b32 v5, 3, v{L}'); a('v_lshl_add_u32 v4, v5, 3, v4')
    a('s_lshl_b32 s34, s23, 16'); a(f'v_add_u32 v{VR0}, s34, v4'); a(f'v_xor_b32 v{VR1}, 128, v{VR0}')
    a('s_lshl_b32 s66, s23, 16'); a('s_lshl_b32 s34, s65, 10'); a('s_add_u32 s66, s66, s34')
    a('s_lshr_b32 s67, s65, 1'); a('s_lshl_b32 s67, s67, 4'); a('s_and_b32 s34, s65, 1'); a('s_lshl_b32 s34, s34, 2'); a('s_add_u32 s67, s67, s34')
    a('s_lshl_b32 s67, s67, 11'); a('s_lshl_b32 s34, s63, 7'); a('s_add_u32 s67, s67, s34')
    a('s_lshl_b32 s34, s23, 16'); a('s_add_u32 s67, s67, s34')
    a('s_lshl_b32 s68, s62, 6'); a('s_add_u32 s68, s68, s23'); a('s_lshl_b32 s68, s68, 2'); a('s_add_u32 s68, s68, s65')
    a('s_lshl_b32 s68, s68, 11'); a(f's_add_u32 s68, s68, {WS_O}')
    a('s_lshl_b32 s32, s21, 7'); a('s_lshl_b32 s34, s22, 2'); a('s_add_u32 s32, s32, s34'); a(f's_add_u32 s32, s32, {WS_FL}')
    a('s_lshr_b32 s33, s62, 1'); a('s_lshl_b32 s33, s33, 7'); a(f's_add_u32 s33, s33, {WS_FL}')
    a(f'v_and_b32 v4, 31, v{L}'); a(f'v_lshlrev_b32 v{VFO}, 2, v4')
    a('s_cmp_eq_u32 s20, 0'); a('s_cselect_b32 s28, 3, 63')
    if fused:
        a('s_waitcnt vmcnt(0) lgkmcnt(0)'); a(f'v_cmp_ne_u32 vcc, 1, v{GR}'); a('s_barrier')
        stp(10)
        a('s_mov_b64 s[36:37], vcc')
        a('s_cmp_eq_u32 s20, 0'); a('s_cbranch_scc0 K2_noq')
        for x in flag_store('s95'): a(x)
        a('K2_noq:')
        wphi_load()
        zero_area()
        a('s_mov_b64 vcc, s[36:37]')
        a('s_cbranch_vccnz K2_spinQ'); a('K2_spinQ_b:')
        stp(11)
        first_loads()
    a('s_waitcnt vmcnt(0) lgkmcnt(0)'); a('s_barrier')
    stp(12)
    srd(a, 16, SO[0], SO[1], 4194304)
    a(f'ds_read_b128 {vr(KB[1])}, v{V16} offset:0'); a(f'ds_read_b128 {vr(KB[1]+4)}, v{V16} offset:1024')
    a(f'ds_read_b128 {vr(KB[0])}, v{VCUR} offset:0'); a(f'ds_read_b128 {vr(KB[0]+4)}, v{VCUR} offset:1024')
    a(f'ds_read_b128 {vr(VB[0])}, v{VCUR} offset:2048'); a(f'ds_read_b128 {vr(VB[0]+4)}, v{VCUR} offset:3072')
    a('s_waitcnt lgkmcnt(4)')
    for q in range(2):
        for x in QK(S[q], KB[1], Q[q], '0'): a(x)
    for x in dma_stage(): a(x)
    a('s_nop 1')
    rowmax(a, 4, range(S[0], S[0]+16), 6); rowmax(a, 5, range(S[1], S[1]+16), 7)
    a('v_mov_b32 v6, v4'); a('v_mov_b32 v7, v5'); a('s_nop 0')
    a('v_permlane32_swap_b32 v4, v6'); a('v_permlane32_swap_b32 v5, v7')
    a('v_max_f32 v4, v4, v6'); a('v_max_f32 v5, v5, v7')
    a(f's_mov_b32 s34, {fhex(-CSHIFT)}')
    a('v_sub_f32 v4, s34, v4'); a('v_sub_f32 v5, s34, v5')
    for r in range(16): a(f'v_mov_b32 v{NEGM[0]+r}, v4')
    a('s_waitcnt lgkmcnt(0)'); a('s_nop 0')
    for x in QK(S[0], KB[0], Q[0], vr(NEGM[0],16)): a(x)
    for r in range(16): a(f'v_mov_b32 v{NEGM[1]+r}, v5')
    a('s_cmp_lt_u32 s20, 4')
    a('s_cselect_b32 s52, s42, s44'); a('s_cselect_b32 s53, s43, s45'); a('s_mov_b32 s54, 2097152'); a('s_mov_b32 s55, 0x20000')
    a('s_and_b32 s34, s20, 3'); a('s_lshl_b32 s35, s2, 2'); a('s_add_u32 s34, s34, s35'); a('s_lshl_b32 s34, s34, 11')
    a(f'v_lshlrev_b32 v4, 5, v{VL}')
    a(f'buffer_load_dword v{FLG}, v4, s[52:55], s34 offen')
    a('s_mov_b32 s27, 2')
    stp(1)
    a('K2_loopA:')
    if fused:
        pre6 = ['s_waitcnt vmcnt(0)', f'v_cmp_ne_u32 vcc, 1, v{FLG}', 's_barrier', 's_cmp_eq_u32 s27, 1', 's_cbranch_scc0 K2_noA1',
                's_cbranch_vccnz K2_spinA1', 'K2_spinA1_b:', 'K2_noA1:']
        iteration(a, pre6=pre6, mid={OPT.get('fa1_u', 2): [f'buffer_load_dword v{FLG}, v{VFO2}, s[12:15], 0 offen sc1'], 6: dma_stage()})
    else:
        iteration(a, pre6=SYNC, mid={6: dma_stage()})
    a('s_sub_u32 s27, s27, 1'); a('s_cmp_lg_u32 s27, 0'); a('s_cbranch_scc1 K2_loopA')
    stp(13)
    def kvp(k): return [f'buffer_load_dwordx4 {vr(KVP+4*k)}, v{V16}, s[12:15], s58 offen{hs()}', 's_add_u32 s58, s58, 8192']
    mid = {u: kvp(2*u) + kvp(2*u+1) for u in range(4)}
    mid[4] = [f'v_lshrrev_b32 v4, 3, v{VL}', 'v_lshlrev_b32 v4, 8, v4', f'v_and_b32 v5, 7, v{VL}', 'v_lshl_add_u32 v4, v5, 2, v4',
              f'buffer_load_dword v{ZR}, v4, s[12:15], s48 offen{hs()}']
    if fused: mid[4] += [f'v_bfe_u32 v5, v{VL}, 4, 1', 'v_lshlrev_b32 v5, 7, v5', f'v_and_b32 v6, 15, v{VL}', 'v_lshl_add_u32 v5, v6, 2, v5',
                         f'buffer_load_dword v{GR}, v5, s[12:15], s57 offen{hs()}']
    else: mid[4] += [f'buffer_load_dword v{GR}, v{VFO}, s[12:15], s57 offen{hs()}']
    mid[5] = [f'buffer_load_dwordx4 {vr(QA_R)}, v{V16}, s[12:15], s49 offen{hs()}', f'buffer_load_dwordx4 {vr(QA_R+4)}, v{V16}, s[12:15], s49 offen offset:1024{hs()}']
    mid[6] = dma_stage()
    iteration(a, pre6=SYNC, mid=mid)
    stp(14)
    a_block(a)
    stp(15)
    a('s_mov_b32 s27, 3')
    a('K2_loopB:')
    lab = 'K2_nofl'
    iteration(a, pre6=SYNC, mid={6: dma_stage() + ['s_cmp_eq_u32 s27, s28', f's_cbranch_scc0 {lab}'] + flag_store('s32') + [f'{lab}:']})
    a('s_sub_u32 s27, s27, 1'); a('s_cmp_lg_u32 s27, 0'); a('s_cbranch_scc1 K2_loopB')
    stp(16)
    vm = VM()
    pf = [W_lines(vm, n) + o_lines(vm, n) for n in range(8)]
    pre6 = ['s_waitcnt vmcnt(0)', f'v_cmp_ne_u32 vcc, 1, v{FLG}', 's_barrier', 's_cbranch_vccnz K2_spinA', 'K2_spinA_b:']
    iteration(a, pre6=pre6, mid={OPT.get('fa_u', 0): [flag_load('s33')], 6: pf[0], 7: pf[1]})
    iteration(a, pre6=None, mid={u: pf[u+2] for u in range(6)}, last=True)
    stp(2)
    a('s_lshl_b32 s34, s20, 12'); a(f's_add_u32 s34, s34, {OX}'); a(f'v_add_u32 v6, s34, v{V16}')
    a('s_lshl_b32 s35, s20, 8'); a(f's_add_u32 s35, s35, {LSX}'); a(f'v_lshlrev_b32 v5, 2, v{VL}'); a('v_add_u32 v7, s35, v5')
    a(f'v_mfma_f32_32x32x16_bf16 {vr(O[1],16)}, {vr(VB[1]+4)}, {vr(P+4)}, {vr(O[1],16)}')
    a(f'v_mfma_f32_16x16x32_bf16 {vr(LS[1])}, {vr(ONES)}, {vr(P+4)}, {vr(LS[1])}')
    a('s_cmp_eq_u32 s23, 0'); a('s_cbranch_scc0 K2_x1')
    a('s_nop 7'); a('s_nop 0')
    for j in range(4): a(f'ds_write_b128 v6, {vr(O[1]+4*j)} offset:{j*1024}')
    a(f'ds_write_b32 v7, v{LS[1]}')
    a('s_branch K2_xj')
    a('K2_x1:')
    for j in range(4): a(f'ds_write_b128 v6, {vr(O[0]+4*j)} offset:{j*1024}')
    a(f'ds_write_b32 v7, v{LS[0]}')
    a('s_waitcnt lgkmcnt(0)'); a('s_nop 2')
    for r in range(16): a(f'v_mov_b32 v{O[0]+r}, v{O[1]+r}')
    a(f'v_mov_b32 v{LS[0]}, v{LS[1]}')
    a('K2_xj:')
    a('s_xor_b32 s34, s34, 16384'); a('s_xor_b32 s35, s35, 1024')
    a(f'v_add_u32 v6, s34, v{V16}'); a('v_add_u32 v7, s35, v5')
    a(f's_waitcnt vmcnt({vm.cnt({"W3"})}) lgkmcnt(0)'); a('s_barrier')
    for j in range(4): a(f'ds_read_b128 {vr(S[1]+4*j)}, v6 offset:{j*1024}')
    a(f'ds_read_b32 v4, v7')
    for n in range(8, 12):
        for x in W_lines(vm, n): a(x)
    a('s_waitcnt lgkmcnt(0)')
    Oc = O[0]; L0 = LS[0]
    for i in range(0, 16, 2): a(f'v_pk_add_f32 {vr(Oc+i,2)}, {vr(Oc+i,2)}, {vr(S[1]+i,2)}')
    a(f'v_add_f32 v{L0}, v{L0}, v4')
    a(f'v_add_f32_e64 v4, |v{Oc}|, |v{Oc+1}|'); a(f'v_add_f32_e64 v5, |v{Oc+2}|, |v{Oc+3}|')
    for i in range(4, 16, 2):
        a(f'v_add_f32_e64 v4, v4, |v{Oc+i}|'); a(f'v_add_f32_e64 v5, v5, |v{Oc+i+1}|')
    a('v_add_f32 v4, v4, v5')
    a(f's_mov_b32 s34, {fhex(2.0**110)}'); a(f's_mov_b32 s35, {fhex(2.0**124)}')
    a(f'v_cmp_ngt_f32 s[36:37], s34, v{L0}')
    a('v_cmp_ngt_f32 s[38:39], s35, v4')
    a(f's_mov_b32 s34, {fhex(2.0**-110)}')
    a('v_cmp_nlt_f32 vcc, s34, v4')
    a('s_nop 1')
    a('s_or_b64 s[36:37], s[36:37], s[38:39]'); a('s_or_b64 vcc, vcc, s[36:37]')
    if OPT.get('forcefb'): a('s_mov_b64 vcc, 1')
    a('s_cbranch_vccnz K2_fallback')
    a('K2_fin:')
    for x in reads(0): a(x)
    a(f'v_rcp_f32 v4, v{L0}'); a(f'v_sub_f32 v5, 1.0, v{GR}'); a('s_nop 0'); a('v_mul_f32 v4, v4, v5')
    for i in range(16): a(f'v_mul_f32 v{Oc+i}, v4, v{Oc+i}')
    for i in range(8): a(f'v_cvt_pk_bf16_f32 v{P+i}, v{Oc+2*i}, v{Oc+2*i+1}')
    a(f's_add_u32 s34, s29, {32*4*2048}')
    a(f'buffer_store_dwordx4 {vr(P)}, v{V16}, s[12:15], s34 offen sc1'); a(f'buffer_store_dwordx4 {vr(P+4)}, v{V16}, s[12:15], s34 offen offset:1024 sc1')
    vm.issue('st0'); vm.issue('st1')
    stp(3)
    FLN = OPT.get('fl_n', 3)
    FBL = OPT.get('fb_l', 6)
    FBC = OPT.get('fb_c', 9)
    nextW = 12; nextO = 8
    done = set()
    for n in range(NK):
        need = {f'o{n}a', f'o{n}b'}
        bar = (n % 4 == 3 and n + 1 < NK)
        if bar: need |= {f'W{m}' for m in range(n + 1, min(n + 5, NK))}
        if n == FLN:
            a('s_waitcnt vmcnt(0) lgkmcnt(0)'); vm.drain(); a('s_barrier')
        else:
            c = vm.cnt(need)
            if n == FBC:
                c2 = vm.cnt({'fb'})
                if c2 is not None: c = c2 if c is None else min(c, c2)
            a(f's_waitcnt vmcnt({c}) lgkmcnt(0)' if c is not None else 's_waitcnt lgkmcnt(0)')
            if n == FBC: a(f'v_cmp_ne_u32 vcc, 1, v{FLG}')
            if bar: a('s_barrier')
        st = WF3[n & 1]; of = OF + (n & 7)*8
        m = []
        for nb in range(4):
            for tb in range(2):
                d = acc(tb, nb)
                m.append(f'v_mfma_f32_16x16x32_bf16 {vr(d)}, {vr(st+nb*4)}, {vr(of+tb*4)}, {"0" if n == 0 else vr(d)}')
        rd = reads(n + 1) if n + 1 < NK else []
        ins = {i: [] for i in range(8)}
        post = []
        if n == FLN:
            ins[0] += ['s_cmp_eq_u32 s20, 0', 's_cbranch_scc0 K3_nofl', f's_add_u32 s34, s32, 1024'] + flag_store('s34') + ['K3_nofl:']
            vm.issue('fl')
            vm.ops.pop()
        if n == FBC:
            ins[0] += ['s_cbranch_vccnz K3_spinB', 'K3_spinB_b:']
        if n >= FLN:
            slot = 1
            lim_w = min(n + 12, NK - 1)
            okO = lambda: nextO < NK and (nextO < 16 or n >= FBC)
            while nextW <= lim_w:
                d = dma_w(nextW); vm.issue(f'W{nextW}'); nextW += 1
                ins[slot - 1] += [d[0]]; ins[slot] += d[1]
                if nextO < n + 8 and okO():
                    ins[slot] += o_lines(vm, nextO); nextO += 1
                slot = min(slot + 2, 7)
            while nextO < n + 8 and okO():
                ins[slot] += o_lines(vm, nextO); nextO += 1; slot = min(slot + 1, 7)
            if nextO == n + 8 and okO():
                post += o_lines(vm, nextO); nextO += 1
        if n == FBL:
            post += [f's_add_u32 s34, s33, 1024', flag_load('s34')]; vm.issue('fb')
        for i, x in enumerate(m):
            a(x)
            if i < len(rd): a(rd[i])
            for y in ins[i]: a(y)
        for y in post: a(y)
    assert nextW == NK and nextO == NK, (nextW, nextO)
    stp(4)
    L = VL
    a('s_lshl_b32 s34, s20, 12'); a(f'v_add_u32 v5, s34, v{V16}')
    a('s_xor_b32 s34, s34, 16384'); a(f'v_add_u32 v6, s34, v{V16}')
    a('s_cmp_eq_u32 s23, 0'); a('s_cbranch_scc0 K3_g1')
    a('s_nop 2')
    for nb in range(4): a(f'ds_write_b128 v5, {vr(acc(1,nb))} offset:{nb*1024}')
    a('s_branch K3_gj')
    a('K3_g1:')
    a('s_nop 2')
    for nb in range(4): a(f'ds_write_b128 v5, {vr(acc(0,nb))} offset:{nb*1024}')
    a('s_waitcnt lgkmcnt(0)')
    for r in range(16): a(f'v_mov_b32 v{ACC+r}, v{ACC+16+r}')
    a('K3_gj:')
    a('s_waitcnt lgkmcnt(0)'); a('s_barrier')
    X = 88; PK = 104
    for nb in range(4): a(f'ds_read_b128 {vr(X+nb*4)}, v6 offset:{nb*1024}')
    a('s_lshl_b32 s34, s62, 7'); a('s_lshl_b32 s35, s65, 5'); a('s_add_u32 s34, s34, s35'); a('s_lshl_b32 s35, s23, 4'); a('s_add_u32 s34, s34, s35')
    a('s_lshl_b32 s34, s34, 11'); a('s_lshl_b32 s35, s63, 7'); a('s_add_u32 s34, s34, s35')
    a(f'v_and_b32 v7, 15, v{L}'); a('v_lshlrev_b32 v7, 11, v7'); a(f'v_lshrrev_b32 v4, 4, v{L}'); a('v_lshl_add_u32 v7, v4, 3, v7')
    for nb in range(4):
        r = ACC + nb*4
        a(f's_waitcnt lgkmcnt({3-nb})')
        a(f'v_pk_add_f32 {vr(r,2)}, {vr(r,2)}, {vr(X+nb*4,2)}'); a(f'v_pk_add_f32 {vr(r+2,2)}, {vr(r+2,2)}, {vr(X+nb*4+2,2)}')
        a(f'v_cvt_pk_bf16_f32 v{PK+2*nb}, v{r}, v{r+1}'); a(f'v_cvt_pk_bf16_f32 v{PK+2*nb+1}, v{r+2}, v{r+3}')
        a(f'buffer_store_dwordx2 {vr(PK+2*nb,2)}, v7, s[16:19], s34 offen offset:{nb*32}' + OPT.get('outfl', ''))
    stp(5)
    if not OPT.get('noendwait') or common.STAMP: a('s_waitcnt vmcnt(0)')
    if common.STAMP:
        stamp_flush(a, 8 if fused else 6, 0 if fused else 1, 12, 20, 216, aux=AUX)
    a('s_endpgm')
    spin_path(a, 'K2_spinA', flag_load('s33'), FLG, 89)
    spin_path(a, 'K3_spinB', flag_load('s35'), FLG, 92, pre=['s_add_u32 s35, s33, 1024'])
    if fused:
        spin_path(a, 'K1_spinR', 'buffer_load_dword v239, off, s[52:55], 0 sc1', 239, 86)
        spin_path(a, 'K2_spinQ', f'buffer_load_dword v{GR}, v{VF8}, s[12:15], s100 offen sc1', GR, 87)
        spin_path(a, 'K2_spinA1', f'buffer_load_dword v{FLG}, v{VFO2}, s[12:15], 0 offen sc1', FLG, 88)
    a('K2_fallback:')
    a(f's_add_u32 s34, s31, {WS_QB}')
    a(f'buffer_load_dwordx4 {vr(Q[0])}, v{V16}, s[12:15], s34 offen{hs()}'); a(f'buffer_load_dwordx4 {vr(Q[0]+4)}, v{V16}, s[12:15], s34 offen offset:1024{hs()}')
    a('s_lshl_b32 s24, s22, 18'); a('s_mov_b32 s27, 64')
    a('v_mov_b32 v4, 0xff800000')
    a('K2_fbl:')
    a(f'buffer_load_dwordx4 {vr(FK)}, v{V16}, s[12:15], s24 offen{hs()}'); a(f'buffer_load_dwordx4 {vr(FK+4)}, v{V16}, s[12:15], s24 offen offset:1024{hs()}')
    a('s_waitcnt vmcnt(0)')
    for x in QK(S[0], FK, Q[0], '0'): a(x)
    a('s_nop 7'); a('s_nop 3')
    rowmax(a, 4, range(S[0], S[0]+16), 5, init=True)
    a('s_add_u32 s24, s24, 4096'); a('s_sub_u32 s27, s27, 1'); a('s_cmp_lg_u32 s27, 0'); a('s_cbranch_scc1 K2_fbl')
    a('v_mov_b32 v5, v4'); a('s_nop 1'); a('v_permlane32_swap_b32 v4, v5'); a('v_max_f32 v4, v4, v5')
    for r in range(16): a(f'v_sub_f32 v{FM+r}, 0, v4'); a(f'v_mov_b32 v{Oc+r}, 0')
    for r in range(4): a(f'v_mov_b32 v{L0+r}, 0')
    a('s_lshl_b32 s24, s22, 18'); a('s_mov_b32 s27, 64')
    a('K2_fb2:')
    a(f'buffer_load_dwordx4 {vr(FK)}, v{V16}, s[12:15], s24 offen{hs()}'); a(f'buffer_load_dwordx4 {vr(FK+4)}, v{V16}, s[12:15], s24 offen offset:1024{hs()}')
    a(f'buffer_load_dwordx4 {vr(FV)}, v{V16}, s[12:15], s24 offen offset:2048{hs()}'); a(f'buffer_load_dwordx4 {vr(FV+4)}, v{V16}, s[12:15], s24 offen offset:3072{hs()}')
    a('s_waitcnt vmcnt(0)')
    for x in QK(S[0], FK, Q[0], vr(FM,16)): a(x)
    a('s_nop 7'); a('s_nop 3')
    for k in range(16): a(f'v_exp_f32 v{S[0]+k}, v{S[0]+k}')
    a('s_nop 0')
    for k in range(8): a(f'v_cvt_pk_bf16_f32 v{P+k}, v{S[0]+2*k}, v{S[0]+2*k+1}')
    a('s_nop 1')
    for s in range(2):
        a(f'v_mfma_f32_32x32x16_bf16 {vr(Oc,16)}, {vr(FV+4*s)}, {vr(P+4*s)}, {vr(Oc,16)}')
        a(f'v_mfma_f32_16x16x32_bf16 {vr(L0)}, {vr(ONES)}, {vr(P+4*s)}, {vr(L0)}')
    a('s_add_u32 s24, s24, 4096'); a('s_sub_u32 s27, s27, 1'); a('s_cmp_lg_u32 s27, 0'); a('s_cbranch_scc1 K2_fb2')
    a('s_nop 7'); a('s_nop 7')
    a('s_branch K2_fin')
    a('K2_end:')
    a('s_endpgm')
```

```python
from common import *
import common
import k1m
from k1m import QBT, QAT, FM_1B, FM_1A
OPT = {}
STG = 32768
AFR = 3*STG
WPH = k1m.WPHI
ZT = AFR + 6144
ZERO = ZT + 128
LSX = 126976
OX = 131072
K23_LDS = 163840
K23_VGPR = 256
CSHIFT = 80.0
SPIN = 4000
VL = 0; V16 = 1; VCUR = 2; VNXT = 3
Q = (8, 16); NEGM = (24, 40); KB = (56, 64); VB = (72, 80); S = (88, 104); P = 120; O = (128, 144); LS = (160, 164); ONES = 168
VO = 172; VWD = 173; VR0 = 174; VR1 = 175; ZR = 176; GR = 177; FLG = 178; VFO = 179; QA_R = 180
KVP = 192
FK = 56; FV = 72; FM = 24; SF = 40
WF3 = (24, 40); ACC = 56; OF = 192
NK = 32

class VM:
    def __init__(s): s.ops = []
    def issue(s, tag): s.ops.append(tag)
    def drain(s): s.ops = []
    def cnt(s, tags):
        idx = [i for i, t in enumerate(s.ops) if t in tags]
        if not idx: return None
        return len(s.ops) - 1 - max(idx)

def ring(s, inc, size, t='s34'):
    return [f's_add_u32 s{s}, s{s}, {inc}', f's_sub_u32 {t}, s{s}, {size}', f's_min_u32 s{s}, s{s}, {t}']
def QK(Sd, K, Qr, C):
    return [f'v_mfma_f32_32x32x16_bf16 {vr(Sd,16)}, {vr(K)}, {vr(Qr)}, {C}',
            f'v_mfma_f32_32x32x16_bf16 {vr(Sd,16)}, {vr(K+4)}, {vr(Qr+4)}, {vr(Sd,16)}']
def hs(): return ' sc1'
VKV = 190
def dma_stage():
    r = ['s_mov_b32 m0, s25', 's_nop 0']
    for i in range(4): r.append(f'buffer_load_dwordx4 v{VKV}, s[12:15], s24 offen offset:{i*1024}{hs()} lds')
    r += ['s_add_u32 s24, s24, 32768', 's_and_b32 s24, s24, 0x3ffff'] + ring(25, STG, 3*STG)
    return r

SIDX = 189
DL = [0]
def dma_mid(mid, after=()):
    mid = dict(mid); m6 = list(mid.get(6, [])); m7 = list(mid.get(7, []))
    d = dma_stage(); mode = OPT.get('dsp', 0)
    ld = d[2:6]; adv = d[6:]
    if mode == 0: m6 += d
    elif mode == 1: m6 += d[:2] + ld[:2]; m7 = d[:2] + ld[2:] + adv + m7
    elif mode == 3: m6 += d[:2] + ld[:1]; m7 = d[:2] + ld[1:] + adv + m7
    elif mode == 2:
        DL[0] += 1; l = f'K2_dr{DL[0]}'
        m6 += ['s_cmp_eq_u32 s23, 0', f's_cbranch_scc0 {l}a'] + d[:6] + [f'{l}a:']
        m7 = ['s_cmp_eq_u32 s23, 0', f's_cbranch_scc1 {l}b'] + d[:6] + [f'{l}b:'] + adv + m7
    mid[6] = m6 + list(after)
    if m7: mid[7] = m7
    return mid
def rowsum(d, b): return f'v_smfmac_f32_16x16x64_bf16 {vr(d)}, {vr(ONES)}, {vr(b,8)}, v{SIDX}'
def pvraw(d, v, b): return f'v_smfmac_f32_32x32x32_bf16 {vr(d,16)}, {vr(v)}, {vr(b,8)}, v{SIDX}'
RAWORD = {
    1: 'e e L1 e P1 M e e Q0 R e e Q1 e e e L0 e P0 e e e e e',
    2: 'e e L1 R e P1 M e e Q0 e e Q1 e e e L0 e P0 e e e e e',
    3: 'e e P1 e e L1 M e Q0 e e Q1 R e e e P0 e e L0 e e e e',
    4: 'e e P1 e L1 M e e Q0 e e Q1 R e e e P0 e L0 e e e e e',
    5: 'e e L1 P1 M e e Q0 R e e Q1 e e e e L0 P0 e e e e e e',
    6: 'e e P1 e L1 R M e Q0 e e Q1 e e e e P0 e L0 e e e e e',
    7: 'e e L1 e P1 M e Q0 e e e Q1 R e e e L0 e P0 e e e e e',
}
def tile_raw(a, u, pre, mid, noqk, nord, first):
    cur = u & 1; nx = cur ^ 1
    i = u >> 1; inext = (u + 1) >> 1; ip = (u - 1) >> 1
    Sc, Sn = S[cur], S[nx]
    qk = QK(Sn, KB[inext & 1], Q[nx], vr(NEGM[nx],16))
    j = i + 1
    reg, off = (VCUR, j*4096) if j < 4 else (VNXT, 0)
    if cur == 0: rd = [f'ds_read_b128 {vr(KB[j & 1])}, v{reg} offset:{off}', f'ds_read_b128 {vr(KB[j & 1]+4)}, v{reg} offset:{off+1024}']
    else: rd = [f'ds_read_b128 {vr(VB[j & 1])}, v{reg} offset:{off+2048}', f'ds_read_b128 {vr(VB[j & 1]+4)}, v{reg} offset:{off+3072}']
    it = {'L1': [rowsum(LS[nx], Sn+8)], 'P1': [pvraw(O[nx], VB[ip & 1]+4, Sn+8)], 'Q0': [qk[0]], 'Q1': [qk[1]],
          'L0': [rowsum(LS[cur], Sc)], 'P0': [pvraw(O[cur], VB[i & 1], Sc)], 'R': rd, 'M': list(mid)}
    if first and u == 0: it['L1'] = it['P1'] = []
    if noqk: it['Q0'] = it['Q1'] = []
    if nord: it['R'] = []
    seq = ['s_waitcnt lgkmcnt(0)'] + list(pre); k = 0
    for t in RAWORD[OPT['raw']].split():
        if t == 'e': seq.append(f'v_exp_f32 v{Sc+k}, v{Sc+k}'); k += 1
        else: seq += it[t]
    assert k == 16
    for x in seq: a(x)
def tile(a, u, pre=(), mid=(), noqk=False, nord=False, z0=False, first=False):
    if OPT.get('raw'): return tile_raw(a, u, pre, mid, noqk, nord, first)
    cur = u & 1; nx = cur ^ 1
    i = u >> 1; inext = (u + 1) >> 1; ip = (u - 1) >> 1
    Sc, Sn = S[cur], S[nx]
    ex = [f'v_exp_f32 v{Sc+k}, v{Sc+k}' for k in range(16)]
    cv = [f'v_cvt_pk_bf16_f32 v{P+k}, v{Sc+2*k}, v{Sc+2*k+1}' for k in range(8)]
    qk = QK(Sn, KB[inext & 1], Q[nx], vr(NEGM[nx],16))
    pv0 = f'v_mfma_f32_32x32x16_bf16 {vr(O[cur],16)}, {vr(VB[i & 1])}, {vr(P)}, {vr(O[cur],16)}'
    l0 = f'v_mfma_f32_16x16x32_bf16 {vr(LS[cur])}, {vr(ONES)}, {vr(P)}, {vr(LS[cur])}'
    pv1p = f'v_mfma_f32_32x32x16_bf16 {vr(O[nx],16)}, {vr(VB[ip & 1]+4)}, {vr(P+4)}, {vr(O[nx],16)}'
    l1p = f'v_mfma_f32_16x16x32_bf16 {vr(LS[nx])}, {vr(ONES)}, {vr(P+4)}, {vr(LS[nx])}'
    if OPT.get('smf'):
        assert not z0
        l0 = None; l1p = rowsum(LS[nx], P)
    if z0 and u < 2:
        pv0 = f'v_mfma_f32_32x32x16_bf16 {vr(O[cur],16)}, {vr(VB[i & 1])}, {vr(P)}, 0'
        l0 = f'v_mfma_f32_16x16x32_bf16 {vr(LS[cur])}, {vr(ONES)}, {vr(P)}, 0'
        if u == 0: pv1p = l1p = None
    j = i + 1
    reg, off = (VCUR, j*4096) if j < 4 else (VNXT, 0)
    if cur == 0: rd = [f'ds_read_b128 {vr(KB[j & 1])}, v{reg} offset:{off}', f'ds_read_b128 {vr(KB[j & 1]+4)}, v{reg} offset:{off+1024}']
    else: rd = [f'ds_read_b128 {vr(VB[j & 1])}, v{reg} offset:{off+2048}', f'ds_read_b128 {vr(VB[j & 1]+4)}, v{reg} offset:{off+3072}']
    if nord: rd = []
    if noqk: qk = [[], []]
    else: qk = [[qk[0]], [qk[1]]]
    seq = ['s_waitcnt lgkmcnt(0)'] + list(pre)
    sm = OPT.get('smf', 0)
    if sm in (0, 1):
        seq += qk[0] + ex[0:3] + [l1p] + rd + ex[3:5] + [pv1p] + list(mid) + ex[5:8] + cv[0:4]
        seq += qk[1] + ex[8:11] + [l0] + ex[11:13] + [pv0] + ex[13:16] + cv[4:8]
    elif sm == 2:
        seq += qk[0] + ex[0:3] + [pv1p] + rd + ex[3:5] + [l1p] + list(mid) + ex[5:8] + cv[0:4]
        seq += qk[1] + ex[8:13] + [pv0] + ex[13:16] + cv[4:8]
    elif sm == 3:
        seq += qk[0] + ex[0:3] + [l1p] + rd + ex[3:5] + [pv1p] + list(mid) + ex[5:8] + cv[0:4]
        seq += qk[1] + ex[8:12] + [pv0] + ex[12:16] + cv[4:8]
    elif sm == 4:
        seq += qk[0] + ex[0:2] + [l1p] + rd + ex[2:4] + [pv1p] + list(mid) + ex[4:8] + cv[0:4]
        seq += qk[1] + ex[8:12] + [pv0] + ex[12:16] + cv[4:8]
    elif sm == 5:
        seq += qk[0] + ex[0:4] + [pv1p] + rd + ex[4:6] + [l1p] + list(mid) + ex[6:8] + cv[0:4]
        seq += qk[1] + ex[8:12] + [pv0] + ex[12:16] + cv[4:8]
    for x in seq:
        if x is not None: a(x)

def iter_end(a):
    a(f'v_mov_b32 v{VCUR}, v{VNXT}')
    for x in ring(26, STG, 3*STG): a(x)
    a(f'v_add_u32 v{VNXT}, s26, v{V16}')

SYNC = ['s_waitcnt vmcnt(0)', 's_barrier']
def iteration(a, pre6=None, mid=None, last=False, z0=False, first=False):
    mid = mid or {}
    for u in range(8):
        tile(a, u, pre=(pre6 if (u == 6 and pre6 is not None) else ()), mid=mid.get(u, ()), noqk=(last and u == 7), nord=(last and u >= 6), z0=z0, first=first)
    if not last: iter_end(a)

def rowmax(a, dst, regs, tmp, init=None):
    r = list(regs)
    if init is None:
        a(f'v_max3_f32 v{dst}, v{r[0]}, v{r[1]}, v{r[2]}'); r = r[3:]
    while len(r) >= 2:
        a(f'v_max3_f32 v{dst}, v{dst}, v{r[0]}, v{r[1]}'); r = r[2:]
    if r: a(f'v_max_f32 v{dst}, v{dst}, v{r[0]}')

def flag_store(soff):
    return ['v_mov_b32 v4, 1', 's_mov_b64 exec, 1', f'buffer_store_dword v4, off, s[12:15], {soff} sc1', 's_mov_b64 exec, -1']
def flag_load(soff):
    return f'buffer_load_dword v{FLG}, v{VFO}, s[12:15], {soff} offen sc1'
def spin_path(a, name, load, reg, cntreg, pre=()):
    a(f'{name}:')
    for x in pre: a(x)
    a('s_mov_b32 s56, 0')
    a(f'{name}_l:')
    a(load)
    a('s_add_u32 s56, s56, 1')
    if common.STAMP: a(f's_add_u32 s{cntreg}, s{cntreg}, 1')
    a('s_waitcnt vmcnt(0)')
    a(f'v_cmp_ne_u32 vcc, 1, v{reg}')
    a(f's_cmp_ge_u32 s56, {SPIN}'); a(f's_cbranch_scc1 {name}_b')
    a('s_nop 1')
    a(f's_cbranch_vccnz {name}_l')
    a(f's_branch {name}_b')

def acc(tb, nb): return ACC + (tb*4 + nb)*4
WB = [0, 65536, 32768, 98304]
VR2 = 189; VR3 = 191
def wslot(n):
    if OPT.get('deep') and OPT.get('wox') and n >= 28: return OX + (n & 3)*4096
    if OPT.get('deep'): return WB[(n & 15) >> 2] + (n & 3)*4096
    return (n & 15)*4096
def oreg(n):
    if OPT.get('deep'):
        m = n & 15
        return OF + m*8 if m < 8 else {8: S[0], 9: S[0]+8, 10: S[1], 11: S[1]+8, 12: O[1], 13: O[1]+8, 14: O[0], 15: O[0]+8}[m]
    return OF + (n & 7)*8
def dma_w(n):
    srd_ = 's[4:7]' if n < 16 else 's[8:11]'
    adv = 's_add_u32 s67, s67, 131072' if n != 15 else f's_sub_u32 s67, s67, {15*131072}'
    if OPT.get('wfix'):
        srd_ = 's[4:7]'; adv = 's_add_u32 s67, s67, 131072' if (n & 3) != 3 else f's_sub_u32 s67, s67, {3*131072}'
    if OPT.get('now3') and n >= 12: return [f's_add_u32 m0, s66, {(n & 15)*4096}', ['s_nop 0', adv]]
    if OPT.get('deep'):
        if OPT.get('now3') and n >= 8: return [f's_add_u32 m0, s66, {wslot(n)}', ['s_nop 0', 's_nop 0']]
        return [f's_add_u32 m0, s66, {wslot(n)}', [f's_add_u32 s59, s67, {(n & (3 if OPT.get("wfix") else 15))*131072}', f'buffer_load_dwordx4 v{VWD}, {srd_}, s59 offen lds']]
    return [f's_add_u32 m0, s66, {(n & 15)*4096}', [f'buffer_load_dwordx4 v{VWD}, {srd_}, s67 offen lds', adv]]
def load_o(n):
    r = oreg(n)
    fl = OPT.get('osc', ' sc1')
    if OPT.get('ofix'): return [f'buffer_load_dwordx4 {vr(r)}, v{VO}, s[12:15], s68 offen{fl}', f'buffer_load_dwordx4 {vr(r+4)}, v{VO}, s[12:15], s68 offen offset:256{fl}', 's_add_u32 s68, s68, 16384' if (n & 3) != 3 else f's_sub_u32 s68, s68, {3*16384}']
    if OPT.get('noo') and n >= 8: return ['s_nop 0', 's_nop 0', 's_add_u32 s68, s68, 16384']
    return [f'buffer_load_dwordx4 {vr(r)}, v{VO}, s[12:15], s68 offen{fl}', f'buffer_load_dwordx4 {vr(r+4)}, v{VO}, s[12:15], s68 offen offset:256{fl}', 's_add_u32 s68, s68, 16384']
def reads(n):
    st = WF3[n & 1]; out = []
    for nb in range(4):
        for jj in range(2):
            w = wslot(n); base = VR0
            if w >= 131072: w -= 131072; base = None
            elif w >= 65536: w -= 65536; base = None
            reg = (VR0 + (nb & 1)) if base else (VR2, VR3)[nb & 1]
            sub = (jj*256 + (nb >> 1)*512) if OPT.get('q64', 1) else (jj*512 + (nb >> 1)*256)
            out.append(f'ds_read_b64_tr_b16 {vr(st+nb*4+jj*2,2)}, v{reg} offset:{w + sub}')
    return out
def W_lines(vm, n):
    d = dma_w(n); vm.issue(f'W{n}')
    return [d[0], 's_nop 0'] + d[1]
def o_lines(vm, n):
    vm.issue(f'o{n}a'); vm.issue(f'o{n}b')
    return load_o(n)

def a_block(a, part=3):
    WF = KB[1]; PQ = 192; E = (192, 208); EP = (112, 104); NUM = (192, 208); DEN = (180, 184); SUM = (120, 80); KVF = 224; ZF = 240
    if OPT.get('raw'): EP = (P, 104)
    if OPT.get('smf'): SUM = (KB[1], 80)
    def wphi_reads():
        a(f'v_lshrrev_b32 v6, 5, v{VL}'); a(f'v_bfe_u32 v7, v{VL}, 2, 2'); a('v_lshl_add_u32 v6, v6, 2, v7'); a('v_lshlrev_b32 v6, 6, v6')
        a(f'v_bfe_u32 v7, v{VL}, 4, 1'); a('v_lshl_add_u32 v6, v7, 5, v6'); a(f'v_and_b32 v7, 3, v{VL}'); a('v_lshl_add_u32 v6, v7, 3, v6'); a(f'v_add_u32 v6, {WPH}, v6')
        for s in range(2):
            for jj in range(2): a(f'ds_read_b64_tr_b16 {vr(WF+4*s+2*jj,2)}, v6 offset:{s*512+jj*1024}')
    if part & 1: a_block1(a, wphi_reads if part == 3 else None)
    if part == 2 and OPT.get('aprio'): a(f's_setprio {OPT["aprio"]}')
    if part == 2: wphi_reads()
    a_block2(a, part, WF, PQ, E, EP, NUM, DEN, SUM, KVF, ZF) if part & 2 else None
    if part == 2 and OPT.get('aprio'): a('s_setprio 0')

def a_block1(a, wphi_reads):
    for r in range(4): a(f'v_mov_b32 v{240+r}, 0')
    a(f'v_mov_b32 v{FLG}, {ZERO}'); a(f'ds_write_b128 v{FLG}, v[240:243]')
    if wphi_reads: wphi_reads()
    R = KVP
    for st in (4, 8, 16):
        for b in range(0, 32, 2*st):
            for h in (0, 2): a(f'v_pk_add_f32 {vr(R+b+h,2)}, {vr(R+b+h,2)}, {vr(R+b+st+h,2)}')
    a(f'v_cvt_pk_bf16_f32 v4, v{R}, v{R+1}'); a(f'v_cvt_pk_bf16_f32 v5, v{R+2}, v{R+3}')
    a('s_lshr_b32 s34, s20, 1'); a('s_lshl_b32 s34, s34, 10'); a('s_and_b32 s35, s20, 1'); a('s_lshl_b32 s35, s35, 3'); a('s_add_u32 s34, s34, s35')
    a(f's_add_u32 s34, s34, {AFR}'); a(f'v_add_u32 v6, s34, v{V16}')
    a(f'ds_write_b64 v6, v[4:5]')
    a(f'v_add_f32_dpp v{ZR}, v{ZR}, v{ZR} row_ror:8 row_mask:0xf bank_mask:0xf')
    a('s_nop 0')
    a(f'v_mov_b32 v7, v{ZR}'); a('s_nop 1'); a(f'v_permlane16_swap_b32 v{ZR}, v7'); a(f'v_add_f32 v{ZR}, v{ZR}, v7')
    a(f'v_mov_b32 v7, v{ZR}'); a('s_nop 1'); a(f'v_permlane32_swap_b32 v{ZR}, v7'); a(f'v_add_f32 v{ZR}, v{ZR}, v7')
    a(f'v_cvt_pk_bf16_f32 v{ZR}, v{ZR}, v{ZR}')
    a('s_lshr_b32 s34, s20, 1'); a('s_lshl_b32 s34, s34, 5'); a('s_and_b32 s35, s20, 1'); a('s_lshl_b32 s35, s35, 3'); a('s_add_u32 s34, s34, s35')
    a(f's_add_u32 s34, s34, {ZT}')
    a(f'v_bfe_u32 v7, v{VL}, 2, 1'); a('v_lshlrev_b32 v7, 4, v7'); a(f'v_and_b32 v6, 3, v{VL}'); a('v_lshl_add_u32 v7, v6, 1, v7'); a('v_add_u32 v7, s34, v7')
    a(f'ds_write_b16 v7, v{ZR}')

def a_block2(a, part, WF, PQ, E, EP, NUM, DEN, SUM, KVF, ZF):
    a('s_waitcnt lgkmcnt(0)')
    a(f'v_mfma_f32_32x32x16_bf16 {vr(PQ,16)}, {vr(WF)}, {vr(QA_R)}, 0')
    a(f'v_mfma_f32_32x32x16_bf16 {vr(PQ,16)}, {vr(WF+4)}, {vr(QA_R+4)}, {vr(PQ,16)}')
    if part == 3: a('s_barrier')
    a(f'v_add_u32 v7, {AFR}, v{V16}')
    for fs in range(4): a(f'ds_read_b128 {vr(KVF+4*fs)}, v7 offset:{fs*1024}')
    a(f'v_lshrrev_b32 v6, 5, v{VL}'); a('v_lshlrev_b32 v6, 4, v6'); a(f'v_add_u32 v6, {ZT}, v6')
    if OPT.get('smf'):
        a(f'v_lshrrev_b32 v4, 4, v{VL}'); a(f'v_lshrrev_b32 v5, 2, v{VL}'); a('v_xor_b32 v4, v4, v5'); a('v_and_b32 v4, 1, v4'); a('v_cmp_eq_u32 vcc, 1, v4')
    else: a(f'v_cmp_eq_u32 vcc, 0, v{ONES}')
    a(f's_mov_b32 s60, {fhex(LOG2E)}'); a(f's_mov_b32 s61, {fhex(-LOG2E)}')
    for fs in range(4):
        a(f'v_add_u32 v7, {fs*32}, v6'); a(f'v_mov_b32 v{ZF+4*fs}, {ZERO}'); a(f'v_cndmask_b32 v7, v7, v{ZF+4*fs}, vcc')
        a(f'ds_read_b128 {vr(ZF+4*fs)}, v7')
    a(f'v_max3_f32 v4, v{PQ}, v{PQ+1}, v{PQ+2}'); a(f'v_min3_f32 v5, v{PQ}, v{PQ+1}, v{PQ+2}')
    for i in range(3, 15, 2):
        a(f'v_max3_f32 v4, v4, v{PQ+i}, v{PQ+i+1}'); a(f'v_min3_f32 v5, v5, v{PQ+i}, v{PQ+i+1}')
    a(f'v_max_f32 v4, v4, v{PQ+15}'); a(f'v_min_f32 v5, v5, v{PQ+15}')
    a('v_mov_b32 v6, v4'); a('v_mov_b32 v7, v5'); a('s_nop 0')
    a('v_permlane32_swap_b32 v4, v6'); a('v_permlane32_swap_b32 v5, v7')
    a('v_max_f32 v4, v4, v6'); a('v_min_f32 v5, v5, v7')
    a('v_mul_f32 v4, s61, v4'); a('v_mul_f32 v5, s60, v5')
    for i in range(16): a(f'v_fma_f32 v{E[1]+i}, v{PQ+i}, s61, v5')
    for i in range(16): a(f'v_fma_f32 v{E[0]+i}, v{PQ+i}, s60, v4')
    for sg in (1, 0):
        for i in range(16): a(f'v_exp_f32 v{E[sg]+i}, v{E[sg]+i}')
    a('s_nop 0')
    for sg in (1, 0):
        for i in range(8): a(f'v_cvt_pk_bf16_f32 v{EP[sg]+i}, v{E[sg]+2*i}, v{E[sg]+2*i+1}')
    RAW = OPT.get('raw')
    if RAW:
        a('v_mov_b32 v6, 0x3f803f80'); a('v_mov_b32 v7, 0')
        for r in range(4): a(f'v_cndmask_b32 v{WF+4+r}, v6, v7, vcc')
    elif OPT.get('smf'):
        for sg in (1, 0):
            for r in range(4): a(f'v_mov_b32 v{SUM[sg]+r}, 0')
    a('s_waitcnt lgkmcnt(0)'); a('s_nop 0')
    for sg in (1, 0):
        for s in range(2):
            fs = sg*2 + s
            a(f'v_mfma_f32_32x32x16_bf16 {vr(NUM[sg],16)}, {vr(KVF+4*fs)}, {vr(EP[sg]+4*s)}, {"0" if s == 0 else vr(NUM[sg],16)}')
            a(f'v_mfma_f32_16x16x32_bf16 {vr(DEN[sg])}, {vr(ZF+4*fs)}, {vr(EP[sg]+4*s)}, {"0" if s == 0 else vr(DEN[sg])}')
            if RAW: a(f'v_mfma_f32_16x16x32_bf16 {vr(SUM[sg])}, {vr(WF+4)}, {vr(EP[sg]+4*s)}, {"0" if s == 0 else vr(SUM[sg])}')
            elif OPT.get('smf'):
                if s == 0: a(rowsum(SUM[sg], EP[sg]))
            else: a(f'v_mfma_f32_16x16x32_bf16 {vr(SUM[sg])}, {vr(ONES)}, {vr(EP[sg]+4*s)}, {"0" if s == 0 else vr(SUM[sg])}')
    a('s_nop 7')
    if OPT.get('smf') and not RAW:
        for sg in (1, 0): a(f'v_add_f32 v{SUM[sg]}, v{SUM[sg]}, v{SUM[sg]+1}')
    a(f'v_rcp_f32 v4, v{SUM[0]}'); a(f'v_rcp_f32 v5, v{SUM[1]}'); a('s_nop 0')
    a(f'v_mul_f32 v6, v{DEN[0]}, v4'); a(f'v_fmac_f32 v6, v{DEN[1]}, v5'); a(f'v_add_f32 v6, {fhex(1e-6)}, v6')
    a('v_rcp_f32 v6, v6'); a('s_nop 0'); a(f'v_mul_f32 v6, v6, v{GR}')
    a('v_mul_f32 v4, v4, v6'); a('v_mul_f32 v5, v5, v6')
    for i in range(16): a(f'v_mul_f32 v{NUM[0]+i}, v4, v{NUM[0]+i}')
    for i in range(16): a(f'v_fmac_f32 v{NUM[0]+i}, v5, v{NUM[1]+i}')
    for i in range(8): a(f'v_cvt_pk_bf16_f32 v{224+i}, v{NUM[0]+2*i}, v{NUM[0]+2*i+1}')
    if OPT.get('qmap'): a('s_lshl_b32 s34, s91, 13'); a('s_add_u32 s34, s34, s29')
    else: a(f's_xor_b32 s34, s29, {OPT.get("hax", 0) * 8192}')
    a(f'buffer_store_dwordx4 {vr(224)}, v{V16}, s[12:15], s34 offen sc1'); a(f'buffer_store_dwordx4 {vr(228)}, v{V16}, s[12:15], s34 offen offset:1024 sc1')

VFO2 = 188
LATE = []
def late_setup():
    if not OPT.get('su2'): return {}
    n = len(LATE); out = {}
    for k, g in enumerate(LATE): out.setdefault(2 + (4*k)//n, []).extend(g)
    return out
def setup(a0):
    del LATE[:]
    class A_:
        late = False
        def __call__(s, x):
            if s.late and OPT.get('su2'): LATE[-1].append(x)
            else: a0(x)
        def L(s): s.late = True; LATE.append([])
        def N(s): s.late = False
    a = A_()
    a.L(); a('s_and_b32 s3, s2, 7'); a('s_lshr_b32 s69, s2, 3'); a.N()
    a(f'v_mov_b32 v{VL}, v185')
    a(f'v_lshlrev_b32 v{V16}, 4, v{VL}')
    a('s_and_b32 s65, s20, 3'); a('s_lshl_b32 s34, s65, 1'); a('s_lshl_b32 s30, s21, 3'); a('s_add_u32 s30, s30, s34')
    a('s_add_u32 s30, s30, s23')
    a('s_add_u32 s35, s21, 1'); a('s_and_b32 s35, s35, 7'); a('s_lshl_b32 s24, s35, 15'); a('s_lshl_b32 s34, s20, 12'); a('s_add_u32 s24, s24, s34')
    a(f's_add_u32 s25, s34, {STG}')
    a('s_lshl_b32 s34, s22, 18'); a(f'v_add_u32 v{VKV}, s34, v{V16}')
    a('s_lshl_b32 s100, s22, 5'); a('s_lshr_b32 s34, s20, 1'); a('s_add_u32 s100, s100, s34'); a('s_lshl_b32 s100, s100, 2'); a(f's_add_u32 s100, s100, {FM_1B}')
    a('s_lshl_b32 s35, s35, 12'); a('s_add_u32 s101, s100, s35')
    a('s_add_u32 s35, s21, 2'); a('s_and_b32 s35, s35, 7'); a('s_lshl_b32 s35, s35, 12'); a('s_add_u32 s64, s100, s35')
    a(f'v_and_b32 v4, 31, v{VL}'); a('v_and_b32 v5, 7, v4'); a('v_lshlrev_b32 v5, 12, v5'); a('v_add_u32 v5, s100, v5')
    a(f'v_add_u32 v6, {FM_1A - FM_1B}, v5'); a('v_cmp_gt_u32 vcc, 8, v4'); a('s_and_b32 s34, s30, 7'); a('s_lshl_b32 s34, s34, 9'); a('v_cndmask_b32 v5, v5, v6, vcc')
    a('s_lshl_b32 s35, s21, 12'); a('s_add_u32 s34, s34, s35'); a(f's_add_u32 s34, s34, {FM_1B}')
    a('v_subrev_u32 v6, 8, v4'); a('v_bfe_u32 v7, v6, 2, 2'); a('v_lshlrev_b32 v7, 7, v7'); a('v_add_u32 v7, s34, v7')
    a('v_cmp_gt_u32 vcc, 16, v6'); a('v_and_b32 v6, 3, v6'); a('v_lshl_add_u32 v7, v6, 2, v7'); a(f'v_cndmask_b32 v{VFO2}, v5, v7, vcc')
    a.L()
    srd(a, 4, 42, 43, 2097152); srd(a, 8, 44, 45, 2097152)
    srd(a, 16, 96, 97, 4194304)
    a.L()
    a('s_lshr_b32 s34, s30, 2'); a('s_lshl_b32 s34, s34, 6'); a('s_add_u32 s34, s34, s22'); a('s_lshl_b32 s34, s34, 2')
    a('s_and_b32 s35, s30, 3'); a('s_add_u32 s34, s34, s35'); a('s_lshl_b32 s29, s34, 11'); a(f's_add_u32 s29, s29, {WS_O}')
    a.N()
    if OPT.get('raw'):
        assert OPT.get('smf') and OPT.get('deep') and not OPT.get('z0') and not OPT.get('asplit')
        a(f'v_and_b32 v4, 7, v{VL}'); a('v_mov_b32 v5, 0x3f803f80'); a('v_mov_b32 v6, 0')
        a('v_cmp_eq_u32 vcc, 0, v4'); a('v_cmp_eq_u32 s[34:35], 4, v4'); a(f'v_mov_b32 v{SIDX}, 0xdddddddd')
        for r in range(2): a(f'v_cndmask_b32 v{ONES+r}, v6, v5, vcc')
        for r in range(2, 4): a(f'v_cndmask_b32 v{ONES+r}, v6, v5, s[34:35]')
    elif OPT.get('smf'):
        assert OPT.get('deep') and not OPT.get('z0')
        a(f'v_and_b32 v4, 6, v{VL}'); a('v_mov_b32 v5, 0x3f803f80'); a('v_mov_b32 v6, 0')
        a('v_cmp_eq_u32 vcc, 0, v4'); a('v_cmp_eq_u32 s[34:35], 4, v4'); a(f'v_and_b32 v7, 1, v{VL}')
        for r in range(2): a(f'v_cndmask_b32 v{ONES+r}, v6, v5, vcc')
        for r in range(2, 4): a(f'v_cndmask_b32 v{ONES+r}, v6, v5, s[34:35]')
        a('v_cmp_eq_u32 vcc, 1, v7'); a('v_mov_b32 v5, 0x44444444'); a('v_mov_b32 v6, 0xeeeeeeee'); a(f'v_cndmask_b32 v{SIDX}, v5, v6, vcc')
        for r in range(4): a(f'v_mov_b32 v{P+r}, 0')
    else:
        a(f'v_lshrrev_b32 v4, 4, v{VL}'); a(f'v_lshrrev_b32 v5, 2, v{VL}'); a('v_xor_b32 v4, v4, v5'); a('v_and_b32 v4, 1, v4')
        a('v_cmp_eq_u32 vcc, 0, v4'); a('v_mov_b32 v5, 0x3f803f80'); a('v_mov_b32 v6, 0')
        for r in range(4): a(f'v_cndmask_b32 v{ONES+r}, v6, v5, vcc')
    if not OPT.get('z0'):
        for q in range(2):
            for r in range(16): a(f'v_mov_b32 v{O[q]+r}, 0')
            for r in range(4): a(f'v_mov_b32 v{LS[q]+r}, 0')
        if not OPT.get('raw'):
            for r in range(4): a(f'v_mov_b32 v{P+4+r}, 0'); a(f'v_mov_b32 v{VB[1]+4+r}, 0')
    a('s_lshl_b32 s34, s23, 14')
    a(f'v_add_u32 v{VCUR}, s34, v{V16}'); a(f'v_add_u32 v{VNXT}, {STG}, v{VCUR}'); a(f's_add_u32 s26, s34, {STG}')
    a.L()
    a('s_lshl_b32 s58, s22, 16'); a('s_lshl_b32 s35, s20, 10'); a('s_add_u32 s58, s58, s35'); a(f's_add_u32 s58, s58, {WS_KVP}')
    a('s_lshl_b32 s34, s22, 11'); a('s_lshl_b32 s35, s20, 5'); a('s_add_u32 s34, s34, s35'); a(f's_add_u32 s48, s34, {WS_ZP}')
    a('s_and_b32 s49, s30, 7'); a('s_lshl_b32 s49, s49, 11'); a(f's_add_u32 s49, s49, {QAT}')
    a(f's_lshl_b32 s34, s30, 9'); a(f's_add_u32 s57, s34, {WS_G}')
    a.L()
    a('s_lshr_b32 s62, s3, 1'); a('s_lshl_b32 s62, s62, 2'); a('s_and_b32 s35, s69, 3'); a('s_add_u32 s62, s62, s35')
    a('s_and_b32 s63, s3, 1'); a('s_lshl_b32 s63, s63, 3'); a('s_lshr_b32 s35, s69, 2'); a('s_add_u32 s63, s63, s35')
    a.N()
    L = VL
    a(f'v_lshrrev_b32 v6, 4, v{L}'); a(f'v_and_b32 v7, 15, v{L}')
    a('v_lshlrev_b32 v4, 9, v6'); a(f'v_lshl_add_u32 v{VO}, v7, 4, v4')
    if OPT.get('q64', 1):
        a(f'v_bfe_u32 v4, v{L}, 4, 1'); a('v_lshlrev_b32 v4, 3, v4'); a(f'v_bfe_u32 v5, v{L}, 2, 2'); a('v_add_u32 v4, v4, v5'); a('v_lshlrev_b32 v4, 11, v4')
        a(f'v_lshrrev_b32 v5, 5, v{L}'); a('v_lshl_add_u32 v4, v5, 6, v4')
        a('s_and_b32 s34, s65, 1'); a(f'v_bfe_u32 v5, v{L}, 1, 1'); a('v_xor_b32 v5, s34, v5'); a('v_lshl_add_u32 v4, v5, 5, v4')
        a(f'v_and_b32 v5, 1, v{L}'); a(f'v_lshl_add_u32 v{VWD}, v5, 4, v4')
        a('v_lshlrev_b32 v4, 10, v6'); a('v_and_b32 v5, 1, v6'); a('v_lshl_add_u32 v4, v5, 5, v4')
        a(f'v_bfe_u32 v5, v{L}, 2, 2'); a('v_lshl_add_u32 v4, v5, 6, v4'); a(f'v_and_b32 v5, 3, v{L}'); a('v_lshl_add_u32 v4, v5, 3, v4')
    else:
        a(f'v_lshrrev_b32 v4, 5, v{L}'); a('v_lshlrev_b32 v4, 3, v4'); a(f'v_bfe_u32 v5, v{L}, 1, 2'); a('v_add_u32 v4, v4, v5'); a('v_lshlrev_b32 v4, 11, v4')
        a('s_and_b32 s34, s65, 1'); a(f'v_bfe_u32 v5, v{L}, 3, 2'); a('v_xor_b32 v5, s34, v5'); a('v_lshl_add_u32 v4, v5, 5, v4')
        a(f'v_and_b32 v5, 1, v{L}'); a(f'v_lshl_add_u32 v{VWD}, v5, 4, v4')
        a('v_lshlrev_b32 v4, 10, v6'); a('v_and_b32 v5, 1, v6'); a('v_lshl_add_u32 v4, v5, 7, v4')
        a(f'v_bfe_u32 v5, v{L}, 2, 2'); a('v_lshl_add_u32 v4, v5, 5, v4'); a(f'v_and_b32 v5, 3, v{L}'); a('v_lshl_add_u32 v4, v5, 3, v4')
    gsh = 14 if OPT.get('deep') else 16
    a(f's_lshl_b32 s34, s23, {gsh}'); a(f'v_add_u32 v{VR0}, s34, v4'); a(f'v_xor_b32 v{VR1}, {32 if OPT.get("q64", 1) else 128}, v{VR0}')
    if OPT.get('deep'):
        if not OPT.get('smf'): a(f'v_add_u32 v{VR2}, 0x10000, v{VR0}')
        a(f'v_add_u32 v{VR3}, 0x10000, v{VR1}')
    a.L()
    a(f's_lshl_b32 s66, s23, {gsh}'); a('s_lshl_b32 s34, s65, 10'); a('s_add_u32 s66, s66, s34')
    a('s_lshr_b32 s67, s65, 1'); a('s_lshl_b32 s67, s67, 4'); a('s_and_b32 s34, s65, 1'); a('s_lshl_b32 s34, s34, 2'); a('s_add_u32 s67, s67, s34')
    a('s_lshl_b32 s67, s67, 11'); a('s_lshl_b32 s34, s63, 7'); a('s_add_u32 s67, s67, s34')
    a('s_lshl_b32 s34, s23, 16'); a('s_add_u32 s67, s67, s34')
    a.L()
    a('s_lshl_b32 s68, s62, 6'); a('s_add_u32 s68, s68, s23'); a('s_lshl_b32 s68, s68, 2'); a('s_add_u32 s68, s68, s65')
    a('s_lshl_b32 s68, s68, 11'); a(f's_add_u32 s68, s68, {WS_O}')
    a('s_lshl_b32 s32, s21, 7'); a('s_lshl_b32 s34, s22, 2'); a('s_add_u32 s32, s32, s34'); a(f's_add_u32 s32, s32, {WS_FL}')
    a('s_lshr_b32 s33, s62, 1'); a('s_lshl_b32 s33, s33, 7'); a(f's_add_u32 s33, s33, {WS_FL}')
    a.N()
    a(f'v_and_b32 v4, 31, v{L}'); a(f'v_lshlrev_b32 v{VFO}, 2, v4')
    a.L()
    a('s_cmp_eq_u32 s20, 0'); a(f's_cselect_b32 s28, {2 if OPT.get("asplit") == 1 else 3}, 63')

def default_plan(FBC, nO, doneW):
    plan = {n: [] for n in range(NK)}
    n = OPT.get('oa0', 0)
    for m in range(nO, 16): plan[n].append('o'); n += 1
    ramp = list(OPT.get('ramp', [2, 2]))
    m = 16; n = FBC
    while m < NK:
        k = ramp.pop(0) if ramp else 1
        for _ in range(min(k, NK - m)):
            plan[n].append('o'); m += 1
        n += 1
    todo = [w for w in range(NK) if w not in doneW]
    order = OPT.get('worder') or sorted(todo)
    wcap = OPT.get('wcap', 1); tot = OPT.get('tot', 3)
    for n in range(NK):
        lastbar = max([b for b in range(3, n + 1) if b % 4 == 3], default=-1)
        k = 0
        for w in list(order):
            if w < 15: ok = True
            elif w == 15 or (w >= 28 and OPT.get('wox')): ok = lastbar >= 3
            else: ok = lastbar >= w - 16
            load = 2*plan[n].count('o') + k
            dead = 4*(w // 4) - 1 - OPT.get('wlead', 3)
            if ok and ((k < wcap and load + 1 <= tot) or n >= dead):
                plan[n].append(w); order.remove(w); k += 1
    assert not order
    if OPT.get('showplan'): print(plan)
    return plan

def pflag(soff): return f'buffer_load_dword v{FLG}, off, s[12:15], {soff} sc1'
def gen_k23(a, name):
    stmap = {2: 5, 4: 6, 5: 7, 1: 4}
    if OPT.get('st_map'): stmap = OPT['st_map']
    def stp(k):
        if stmap.get(k) is not None: stamp(a, stmap[k])
    def stl(k):
        t = Asm()
        if stmap.get(k) is not None: stamp(t, stmap[k])
        return [x for x in t.lines if x]
    AUX = {0: 86, 2: 87, 3: 93, 4: 88, 5: 89, 6: 92}
    EF = OPT.get('ef', 0)
    def blockB(a):
        setup(a)
        if not OPT.get('minst'): stamp(a, 3)
        if EF:
            a('s_waitcnt vmcnt(0)')
            stp(28)
            for x in flag_store('s95'): a(x)
        if OPT.get('prioB') and not OPT.get('prioB_late'): a('s_setprio 0')
        a('s_waitcnt lgkmcnt(0)'); a('s_barrier')
        stp(10)
        k1m.red_B(a)
        a('s_waitcnt lgkmcnt(0)')
        k1m.red_B_sum(a)
        a('s_branch K2_join')
    def blockA(a):
        a('K1_epiA:')
        if OPT.get('cpfA'):
            n, st = OPT['cpfA']
            a('s_getpc_b64 s[62:63]'); a(f'v_min_u32 v248, {n-1}, v185'); a('s_lshl_b32 s60, s24, 0')
            a(f's_mul_i32 s60, s60, {n*st}'); a(f'v_mul_u32_u24 v248, {st}, v248'); a('v_add_u32 v248, s60, v248')
            a(f'v_min_u32 v248, K2_end-K1_epiA, v248')
            a('v_mov_b32 v249, s63'); a('v_add_co_u32 v248, vcc, s62, v248'); a('s_nop 1'); a('v_addc_co_u32 v249, vcc, 0, v249, vcc')
            a('global_load_dword v250, v[248:249], off')
        k1m.epi_A(a)
        if not OPT.get('minst'): stamp(a, 3)
        a('s_waitcnt lgkmcnt(0)'); a('s_barrier')
        stp(10)
        setup(a)
    def farB(a):
        a('K1_epiB:')
        if OPT.get('prioB'): a(f's_setprio {OPT["prioB"]}')
        k1m.epi_B(a)
        late = [list(g) for g in LATE]
        blockB(a)
        LATE[:] = late
    if OPT.get('afirst') == 2:
        raise SystemExit
    if OPT.get('afirst'):
        blockA(a)
    else:
        blockB(a)
        if OPT.get('padA') is not None:
            a('.p2align 6')
            if OPT['padA']: a(f'.fill {OPT["padA"] // 4}, 4, 0xbf800000')
        if OPT.get('probe') is not None: a('K1_probeA:'); a('s_branch K1_probeA_b')
        blockA(a)
    a('K2_join:')
    stp(29)
    a('s_lshl_b32 s34, s65, 12'); a(f's_add_u32 s34, s34, {QBT}'); a(f'v_add_u32 v4, s34, v{V16}')
    for q in range(2):
        a(f'ds_read_b128 {vr(Q[q])}, v4 offset:{q*2048}'); a(f'ds_read_b128 {vr(Q[q]+4)}, v4 offset:{q*2048+1024}')
    a(f'ds_read_b128 {vr(KB[1])}, v{V16} offset:0'); a(f'ds_read_b128 {vr(KB[1]+4)}, v{V16} offset:1024')
    a(f'ds_read_b128 {vr(KB[0])}, v{VCUR} offset:0'); a(f'ds_read_b128 {vr(KB[0]+4)}, v{VCUR} offset:1024')
    a(f'ds_read_b128 {vr(VB[0])}, v{VCUR} offset:2048'); a(f'ds_read_b128 {vr(VB[0]+4)}, v{VCUR} offset:3072')
    if OPT.get('p1_at', 'init') == 'init': a(pflag('s101'))
    if EF >= 2:
        a('s_cmp_eq_u32 s23, 0'); a('s_cbranch_scc1 K2_nokvp0')
        for x in k1m.red_B_stores(): a(x)
        a('K2_nokvp0:')
    a('s_waitcnt lgkmcnt(4)')
    for q in range(2):
        for x in QK(S[q], KB[1], Q[q], '0'): a(x)
    a('s_nop 7'); a('s_nop 3')
    stp(30)
    rowmax(a, 4, range(S[0], S[0]+16), 6); rowmax(a, 5, range(S[1], S[1]+16), 7)
    a('v_mov_b32 v6, v4'); a('v_mov_b32 v7, v5'); a('s_nop 0')
    a('v_permlane32_swap_b32 v4, v6'); a('v_permlane32_swap_b32 v5, v7')
    a('v_max_f32 v4, v4, v6'); a('v_max_f32 v5, v5, v7')
    a(f's_mov_b32 s34, {fhex(-CSHIFT)}')
    a('v_sub_f32 v4, s34, v4'); a('v_sub_f32 v5, s34, v5')
    if OPT.get('pkm'):
        for r in range(0, 16, 2): a(f'v_pk_mov_b32 {vr(NEGM[0]+r,2)}, v[4:5], v[4:5] op_sel:[0,0]')
    else:
        for r in range(16): a(f'v_mov_b32 v{NEGM[0]+r}, v4')
    a('s_waitcnt lgkmcnt(0)'); a('s_nop 0')
    for x in QK(S[0], KB[0], Q[0], vr(NEGM[0],16)): a(x)
    if OPT.get('pkm'):
        for r in range(0, 16, 2): a(f'v_pk_mov_b32 {vr(NEGM[1]+r,2)}, v[4:5], v[4:5] op_sel:[1,1]')
    else:
        for r in range(16): a(f'v_mov_b32 v{NEGM[1]+r}, v5')
    if OPT.get('p1_at', 'init') == 'end': a(pflag('s101'))
    if EF: a('s_nop 1' if OPT.get('pkm') else 's_nop 0')
    if not EF:
        a('s_cmp_eq_u32 s23, 0'); a('s_cbranch_scc1 K2_nofB')
        stp(27)
        a('s_waitcnt vmcnt(1)')
        stp(28)
        for x in flag_store('s95'): a(x)
        if OPT.get('prioB') and OPT.get('prioB_late'): a('s_setprio 0')
        a('K2_nofB:')
    stp(1)
    chk1 = ['s_cmp_eq_u32 s23, 0', 's_cbranch_scc1 K2_w1a', 's_waitcnt vmcnt(1)', 'K2_w1a:', 's_cbranch_scc0 K2_w1b', 's_waitcnt vmcnt(0)', 'K2_w1b:',
            f'v_cmp_ne_u32 vcc, 1, v{FLG}', 's_nop 1', 's_cbranch_vccnz K2_spinP1', 'K2_spinP1_b:']
    if EF:
        w = ['s_waitcnt vmcnt(0)'] if EF == 1 else ['s_cmp_eq_u32 s23, 0', 's_cbranch_scc1 K2_w1a', 's_waitcnt vmcnt(3)', 'K2_w1a:', 's_cbranch_scc0 K2_w1b', 's_waitcnt vmcnt(0)', 'K2_w1b:']
        chk1 = w + [f'v_cmp_ne_u32 vcc, 1, v{FLG}', 's_nop 1', 's_cbranch_vccnz K2_spinP1', 'K2_spinP1_b:']
    chk1 += stl(20) + dma_stage()
    if EF < 2: chk1 += ['s_cmp_eq_u32 s23, 0', 's_cbranch_scc1 K2_nokvp'] + k1m.red_B_stores() + ['K2_nokvp:']
    chk1 += [pflag('s64')]
    pfo = ['s_cmp_lt_u32 s20, 4', 's_cselect_b32 s52, s42, s44', 's_cselect_b32 s53, s43, s45', 's_mov_b32 s54, 2097152', 's_mov_b32 s55, 0x20000',
           's_and_b32 s34, s20, 3', 's_lshl_b32 s35, s2, 2', 's_add_u32 s34, s34, s35', 's_lshl_b32 s34, s34, 11', f'v_lshlrev_b32 v4, 5, v{VL}',
           'buffer_load_dword v243, v4, s[52:55], s34 offen']
    dbgw = (['s_waitcnt vmcnt(2)'] + stl(31) + ['s_waitcnt vmcnt(1)'] + stl(32)) if OPT.get('dbgw') else []
    pre6 = stl(21) + dbgw + ['s_waitcnt vmcnt(0)'] + stl(22) + [f'v_cmp_ne_u32 vcc, 1, v{FLG}', 's_barrier', 's_cbranch_vccnz K2_spinP2', 'K2_spinP2_b:'] + stl(23) + [
            's_cmp_eq_u32 s23, 0', 's_cbranch_scc1 K2_nofA', f's_add_u32 s34, s95, {FM_1A - FM_1B}'] + flag_store('s34') + ['K2_nofA:']
    u1 = OPT.get('p1_u', 2)
    mid0 = dma_mid({u1: chk1}, pfo)
    if EF >= 3:
        ft = OPT.get('fa_t', 4)
        assert u1 < ft < 6
        mid0[ft] = ['s_cmp_eq_u32 s23, 0', 's_cbranch_scc1 K2_nofA', 's_waitcnt vmcnt(5)', f's_add_u32 s34, s95, {FM_1A - FM_1B}'] + flag_store('s34') + ['K2_nofA:']
        pre6 = stl(21) + ['s_cmp_eq_u32 s23, 0', 's_cbranch_scc1 K2_w6a', 's_waitcnt vmcnt(1)', 'K2_w6a:', 's_cbranch_scc0 K2_w6b', 's_waitcnt vmcnt(0)', 'K2_w6b:'] + stl(22) + [
                f'v_cmp_ne_u32 vcc, 1, v{FLG}', 's_barrier', 's_cbranch_vccnz K2_spinP2', 'K2_spinP2_b:'] + stl(23)
    for u, l in late_setup().items(): mid0[u] = list(mid0.get(u, [])) + l
    iteration(a, pre6=pre6, mid=mid0, z0=bool(OPT.get('z0')), first=True)
    stp(11)
    dbgw = (['s_waitcnt vmcnt(1)'] + stl(33)) if OPT.get('dbgw') else []
    pre6 = stl(24) + dbgw + ['s_waitcnt vmcnt(0)'] + stl(25) + [f'v_cmp_ne_u32 vcc, 1, v{FLG}', 's_barrier', 's_cbranch_vccnz K2_spinA1', 'K2_spinA1_b:'] + stl(26)
    def kvp(k): return [f'buffer_load_dwordx4 {vr(KVP+4*k)}, v{V16}, s[12:15], s58 offen{hs()}', 's_add_u32 s58, s58, 8192']
    zg = [f'v_lshrrev_b32 v4, 3, v{VL}', 'v_lshlrev_b32 v4, 8, v4', f'v_and_b32 v5, 7, v{VL}', 'v_lshl_add_u32 v4, v5, 2, v4',
          f'buffer_load_dword v{ZR}, v4, s[12:15], s48 offen{hs()}']
    zg += [f'v_bfe_u32 v5, v{VL}, 3, 2', 'v_lshlrev_b32 v5, 7, v5', f'v_and_b32 v6, 7, v{VL}', 'v_lshl_add_u32 v5, v6, 2, v5',
           f'buffer_load_dword v{GR}, v5, s[12:15], s57 offen{hs()}']
    AS = OPT.get('asplit', 0)
    mid1 = dma_mid({OPT.get('fa1_u', 2): [f'buffer_load_dword v{FLG}, v{VFO2}, s[12:15], 0 offen sc1']})
    if AS == 2:
        mid1[6] = sum([kvp(k) for k in range(4)], []) + zg + dma_stage(); mid1[7] = sum([kvp(k) for k in range(4, 8)], [])
    iteration(a, pre6=pre6, mid=mid1)
    stp(13)
    mid = {}
    if AS == 2:
        t = Asm(); a_block(t, 1)
        mid[OPT.get('a1_u', 4)] = ['s_waitcnt vmcnt(0)'] + [x for x in t.lines if x]
    else:
        mid = {u: kvp(2*u) + kvp(2*u+1) for u in range(4)}
        mid[4] = zg
    mid[5] = mid.get(5, []) + [f'v_add_u32 v4, s49, v{V16}', f'ds_read_b128 {vr(QA_R)}, v4', f'ds_read_b128 {vr(QA_R+4)}, v4 offset:1024']
    mid = dma_mid(mid)
    iteration(a, pre6=SYNC, mid=mid)
    stp(14)
    if AS == 2:
        a_block(a, 2)
    elif AS:
        a_block(a, 1)
        iteration(a, pre6=SYNC, mid={6: dma_stage()})
        stp(17)
        a_block(a, 2)
    else:
        a_block(a)
    stp(15)
    a(f's_mov_b32 s27, {2 if AS == 1 else 3}')
    if OPT.get('alB'): a('s_branch K2_loopB'); a('; never executed'); a(f'.p2alignl {OPT["alB"]}, 0xbf810000')
    a('K2_loopB:')
    lab = 'K2_nofl'
    iteration(a, pre6=SYNC, mid=dma_mid({}, ['s_cmp_eq_u32 s27, s28', f's_cbranch_scc0 {lab}'] + flag_store('s32') + [f'{lab}:']))
    a('s_sub_u32 s27, s27, 1'); a('s_cmp_lg_u32 s27, 0'); a('s_cbranch_scc1 K2_loopB')
    stp(16)
    vm = VM()
    deep = OPT.get('deep')
    RX = S[1]
    if deep:
        RX = KB[0]
        w6 = OPT.get('w6', [[], [], [], [], [], []])
        wt = OPT.get('wt', [[0], [1], [2], [3], [4], [5], [6], [7]])
        mid6 = {u: [] for u in range(8)}
        mid6[0] += [flag_load('s33')]; vm.issue('fa')
        doneW = set()
        for u in range(6):
            for n in w6[u]: mid6[u] += W_lines(vm, n); doneW.add(n)
        c = vm.cnt({'fa'})
        pre6 = [f's_waitcnt vmcnt({c})', f'v_cmp_ne_u32 vcc, 1, v{FLG}', 's_barrier', 's_cbranch_vccnz K2_spinA', 'K2_spinA_b:']
        sched = []
        for t in range(8):
            l = []
            for n in wt[t]: l += W_lines(vm, n); doneW.add(n)
            l += o_lines(vm, t)
            sched.append(l)
        mid6[6] += sched[0]; mid6[7] += sched[1]
        mid7 = {u: sched[u+2] for u in range(6)}
        mid7[6] = []; mid7[7] = []
        nO = 8
        for n in range(8, OPT.get('o_u7', 8)): mid7[7] += o_lines(vm, n); nO += 1
        assert nO <= 10 and not (doneW & {8, 9, 10, 11, 15}) and {0, 1, 2, 3} <= doneW
        iteration(a, pre6=pre6, mid=mid6)
        iteration(a, pre6=None, mid=mid7, last=True)
    else:
        pf = [W_lines(vm, n) + o_lines(vm, n) for n in range(8)]
        pre6 = ['s_waitcnt vmcnt(0)', f'v_cmp_ne_u32 vcc, 1, v{FLG}', 's_barrier', 's_cbranch_vccnz K2_spinA', 'K2_spinA_b:']
        iteration(a, pre6=pre6, mid={OPT.get('fa_u', 0): [flag_load('s33')], 6: pf[0], 7: pf[1]})
        iteration(a, pre6=None, mid={u: pf[u+2] for u in range(6)}, last=True)
    stp(2)
    a('s_lshl_b32 s34, s20, 12'); a(f's_add_u32 s34, s34, {OX}'); a(f'v_add_u32 v6, s34, v{V16}')
    a('s_lshl_b32 s35, s20, 8'); a(f's_add_u32 s35, s35, {LSX}'); a(f'v_lshlrev_b32 v5, 2, v{VL}'); a('v_add_u32 v7, s35, v5')
    SMF = OPT.get('smf'); RAW = OPT.get('raw')
    if RAW: a('s_nop 0'); a(pvraw(O[1], VB[1]+4, S[1]+8))
    else: a(f'v_mfma_f32_32x32x16_bf16 {vr(O[1],16)}, {vr(VB[1]+4)}, {vr(P+4)}, {vr(O[1],16)}')
    if RAW: a(rowsum(LS[1], S[1]+8))
    elif SMF: a(rowsum(LS[1], P)); a(f'v_add_f32 v{LS[0]}, v{LS[0]}, v{LS[0]+1}')
    else: a(f'v_mfma_f32_16x16x32_bf16 {vr(LS[1])}, {vr(ONES)}, {vr(P+4)}, {vr(LS[1])}')
    a('s_cmp_eq_u32 s23, 0'); a('s_cbranch_scc0 K2_x1')
    a('s_nop 7'); a('s_nop 0')
    if SMF and not RAW: a(f'v_add_f32 v{LS[1]}, v{LS[1]}, v{LS[1]+1}')
    for j in range(4): a(f'ds_write_b128 v6, {vr(O[1]+4*j)} offset:{j*1024}')
    a(f'ds_write_b32 v7, v{LS[1]}')
    a('s_branch K2_xj')
    a('K2_x1:')
    for j in range(4): a(f'ds_write_b128 v6, {vr(O[0]+4*j)} offset:{j*1024}')
    a(f'ds_write_b32 v7, v{LS[0]}')
    a('s_waitcnt lgkmcnt(0)'); a('s_nop 2')
    for r in range(16): a(f'v_mov_b32 v{O[0]+r}, v{O[1]+r}')
    if SMF and not RAW: a(f'v_add_f32 v{LS[0]}, v{LS[1]}, v{LS[1]+1}')
    else: a(f'v_mov_b32 v{LS[0]}, v{LS[1]}')
    a('K2_xj:')
    a('s_xor_b32 s34, s34, 16384'); a('s_xor_b32 s35, s35, 1024')
    a(f'v_add_u32 v6, s34, v{V16}'); a('v_add_u32 v7, s35, v5')
    a(f's_waitcnt vmcnt({vm.cnt({"W3"})}) lgkmcnt(0)'); a('s_barrier')
    for j in range(4): a(f'ds_read_b128 {vr(RX+4*j)}, v6 offset:{j*1024}')
    a(f'ds_read_b32 v4, v7')
    if deep:
        def deep_items(items):
            nonlocal nO
            for it_ in items:
                if it_ == 'o':
                    for x in o_lines(vm, nO): a(x)
                    nO += 1
                else:
                    n = int(it_[1:]); doneW.add(n)
                    for x in W_lines(vm, n): a(x)
        deep_items(OPT.get('post_be', ['W8', 'W9', 'W10', 'W11']))
        assert nO <= 14
    else:
        for n in range(8, 12):
            for x in W_lines(vm, n): a(x)
    a('s_waitcnt lgkmcnt(0)')
    Oc = O[0]; L0 = LS[0]
    for i in range(0, 16, 2): a(f'v_pk_add_f32 {vr(Oc+i,2)}, {vr(Oc+i,2)}, {vr(RX+i,2)}')
    a(f'v_add_f32 v{L0}, v{L0}, v4')
    a(f'v_add_f32_e64 v4, |v{Oc}|, |v{Oc+1}|'); a(f'v_add_f32_e64 v5, |v{Oc+2}|, |v{Oc+3}|')
    for i in range(4, 16, 2):
        a(f'v_add_f32_e64 v4, v4, |v{Oc+i}|'); a(f'v_add_f32_e64 v5, v5, |v{Oc+i+1}|')
    a('v_add_f32 v4, v4, v5')
    a(f's_mov_b32 s34, {fhex(2.0**110)}'); a(f's_mov_b32 s35, {fhex(2.0**124)}')
    a(f'v_cmp_ngt_f32 s[36:37], s34, v{L0}')
    a('v_cmp_ngt_f32 s[38:39], s35, v4')
    a(f's_mov_b32 s34, {fhex(2.0**-110)}')
    a('v_cmp_nlt_f32 vcc, s34, v4')
    a('s_nop 1')
    a('s_or_b64 s[36:37], s[36:37], s[38:39]'); a('s_or_b64 vcc, vcc, s[36:37]')
    if OPT.get('forcefb'): a('s_mov_b64 vcc, 1')
    a('s_cbranch_vccnz K2_fallback')
    a('K2_fin:')
    if SMF: a(f'v_add_u32 v{VR2}, 0x10000, v{VR0}')
    for x in reads(0): a(x)
    a(f'v_rcp_f32 v4, v{L0}'); a(f'v_sub_f32 v5, 1.0, v{GR}'); a('s_nop 0'); a('v_mul_f32 v4, v4, v5')
    for i in range(16): a(f'v_mul_f32 v{Oc+i}, v4, v{Oc+i}')
    for i in range(8): a(f'v_cvt_pk_bf16_f32 v{P+i}, v{Oc+2*i}, v{Oc+2*i+1}')
    a(f's_add_u32 s34, s29, {32*4*2048}')
    a(f'buffer_store_dwordx4 {vr(P)}, v{V16}, s[12:15], s34 offen sc1'); a(f'buffer_store_dwordx4 {vr(P+4)}, v{V16}, s[12:15], s34 offen offset:1024 sc1')
    vm.issue('st0'); vm.issue('st1')
    if deep: deep_items(OPT.get('post_st', []))
    stp(3)
    FLN = OPT.get('fl_n', 3)
    FBL = OPT.get('fb_l', 6)
    FBC = OPT.get('fb_c', 9)
    nextW = 12; nextO = 8
    done = set()
    plan = OPT.get('plan') or (default_plan(FBC, nO, doneW) if deep else None)
    for n in range(NK):
        need = {f'o{n}a', f'o{n}b'}
        bar = (n % 4 == 3 and n + 1 < NK)
        if bar: need |= {f'W{m}' for m in range(n + 1, min(n + 5, NK))}
        assert all(t in vm.ops for t in need) or not deep, (n, need)
        if n == FLN and not OPT.get('early3'):
            a('s_waitcnt vmcnt(0) lgkmcnt(0)'); vm.drain(); a('s_barrier')
        elif n == FLN:
            c = vm.cnt(need | {'st0', 'st1'})
            a(f's_waitcnt vmcnt({c}) lgkmcnt(0)'); a('s_barrier')
        else:
            c = vm.cnt(need)
            if n == FBC:
                c2 = vm.cnt({'fb'})
                if c2 is not None: c = c2 if c is None else min(c, c2)
            a(f's_waitcnt vmcnt({c}) lgkmcnt(0)' if c is not None else 's_waitcnt lgkmcnt(0)')
            if n == FBC: a(f'v_cmp_ne_u32 vcc, 1, v{FLG}')
            if bar: a('s_barrier')
        stp(100 + n)
        st = WF3[n & 1]; of = oreg(n)
        m = []
        for nb in range(4):
            for tb in ((1, 0) if (OPT.get('snake', 0) & 2) and nb % 2 == 0 else (0, 1)):
                d = acc(tb, nb)
                m.append(f'v_mfma_f32_16x16x32_bf16 {vr(d)}, {vr(st+nb*4)}, {vr(of+tb*4)}, {"0" if n == 0 else vr(d)}')
        rd = reads(n + 1) if n + 1 < NK else []
        ins = {i: [] for i in range(8)}
        post = []
        if OPT.get('tlb') == n:
            ins[0] += ['s_lshl_b32 s48, s62, 7', 's_lshl_b32 s49, s65, 5', 's_add_u32 s48, s48, s49', 's_lshl_b32 s49, s23, 4', 's_add_u32 s48, s48, s49',
                       's_lshl_b32 s48, s48, 11', 's_lshl_b32 s49, s63, 7', 's_add_u32 s48, s48, s49', 's_add_u32 s49, s48, 16384',
                       f'v_lshrrev_b32 v14, 3, v{VL}', f'v_xor_b32 v13, v14, v{VL}', 'v_and_b32 v13, 7, v13', 'v_lshlrev_b32 v13, 4, v13', 'v_lshl_add_u32 v13, v14, 11, v13']
            if not OPT.get('tlbdry'):
                ins[0] += ['buffer_load_dword v14, v13, s[16:19], s48 offen', 'buffer_load_dword v15, v13, s[16:19], s49 offen']
                vm.issue('tl0'); vm.issue('tl1')
        if n == FLN:
            ins[0] += ['s_cmp_eq_u32 s20, 0', 's_cbranch_scc0 K3_nofl', f's_add_u32 s34, s32, 1024'] + flag_store('s34') + ['K3_nofl:']
            vm.issue('fl')
            vm.ops.pop()
        if n == FBC:
            ins[0] += ([] if OPT.get('nofb') else ['s_cbranch_vccnz K3_spinB']) + ['K3_spinB_b:'] + stl(99)
        if deep:
            lastbar = max([b for b in range(3, n + 1) if b % 4 == 3], default=-1)
            slot = OPT.get('slot0', 1); inpost = False
            for it_ in plan.get(n, []):
                if it_ != 'o':
                    m_ = it_
                    if m_ < 15: ok = True
                    elif m_ == 15 or (m_ >= 28 and OPT.get('wox')): ok = lastbar >= 3
                    else: ok = lastbar >= m_ - 16
                    assert ok and m_ not in doneW, (n, m_)
                    d = dma_w(m_); vm.issue(f'W{m_}'); doneW.add(m_)
                    lines = [d[0]] + d[1]
                else:
                    m_ = nO; nO += 1
                    assert m_ < NK and (m_ < 16 or (n >= FBC and m_ - 16 <= n)), (n, m_)
                    if m_ - 16 == n: inpost = True
                    lines = o_lines(vm, m_)
                if inpost: post += lines
                else: ins[slot] += lines
                slot = min(slot + OPT.get('sstep', 3), 7)
            if n == 24 and OPT.get('wox'): ins[0] += [f'v_add_u32 v{VR2}, 0x10000, v{VR2}', f'v_add_u32 v{VR3}, 0x10000, v{VR3}']
            if n == NK - 1: nextW = NK if len(doneW) == NK else -1; nextO = nO
        elif n >= FLN or OPT.get('early3'):
            slot = 1
            lim_w = min(n + 12, NK - 1)
            okO = lambda: nextO < NK and (nextO < 16 or n >= FBC)
            while nextW <= lim_w:
                d = dma_w(nextW); vm.issue(f'W{nextW}'); nextW += 1
                ins[slot - 1] += [d[0]]; ins[slot] += d[1]
                if nextO < n + 8 and okO():
                    ins[slot] += o_lines(vm, nextO); nextO += 1
                slot = min(slot + 2, 7)
            while nextO < n + 8 and okO():
                ins[slot] += o_lines(vm, nextO); nextO += 1; slot = min(slot + 1, 7)
            if nextO == n + 8 and okO():
                post += o_lines(vm, nextO); nextO += 1
        if n == FBL:
            post += [f's_add_u32 s34, s33, 1024', flag_load('s34')]; vm.issue('fb')
        rdf = OPT.get('rdfast', 1)
        for i, x in enumerate(m):
            a(x)
            for y in rd[i*rdf:(i+1)*rdf]: a(y)
            for y in ins[i]: a(y)
        for y in post: a(y)
    assert nextW == NK and nextO == NK, (nextW, nextO)
    stp(4)
    L = VL
    a('s_lshl_b32 s34, s20, 12'); a(f'v_add_u32 v5, s34, v{V16}')
    a('s_xor_b32 s34, s34, 16384'); a(f'v_add_u32 v6, s34, v{V16}')
    a('s_cmp_eq_u32 s23, 0'); a('s_cbranch_scc0 K3_g1')
    a('s_nop 2')
    for nb in range(4): a(f'ds_write_b128 v5, {vr(acc(1,nb))} offset:{nb*1024}')
    a('s_branch K3_gj')
    a('K3_g1:')
    a('s_nop 2')
    for nb in range(4): a(f'ds_write_b128 v5, {vr(acc(0,nb))} offset:{nb*1024}')
    a('s_waitcnt lgkmcnt(0)')
    for r in range(16): a(f'v_mov_b32 v{ACC+r}, v{ACC+16+r}')
    a('K3_gj:')
    a('s_waitcnt lgkmcnt(0)'); a('s_barrier')
    X = 88; PK = 104
    for nb in range(4): a(f'ds_read_b128 {vr(X+nb*4)}, v6 offset:{nb*1024}')
    if not (OPT.get('outT') and OPT.get('tlb') is not None):
        a('s_lshl_b32 s34, s62, 7'); a('s_lshl_b32 s35, s65, 5'); a('s_add_u32 s34, s34, s35'); a('s_lshl_b32 s35, s23, 4'); a('s_add_u32 s34, s34, s35')
        a('s_lshl_b32 s34, s34, 11'); a('s_lshl_b32 s35, s63, 7'); a('s_add_u32 s34, s34, s35')
    if OPT.get('outT'):
        a(f'v_and_b32 v7, 15, v{L}'); a(f'v_lshrrev_b32 v4, 5, v{L}'); a('v_xor_b32 v4, v4, v7'); a('v_and_b32 v4, 7, v4'); a('v_lshlrev_b32 v4, 4, v4')
        a('v_lshl_add_u32 v4, v7, 7, v4'); a(f'v_bfe_u32 v8, v{L}, 4, 1'); a('v_lshl_add_u32 v4, v8, 3, v4')
        a('s_lshl_b32 s35, s20, 11'); a('s_add_u32 s35, s35, 32768'); a('v_add_u32 v8, s35, v4')
        for nb in range(1, 4): a(f'v_xor_b32 v{8+nb}, {nb << 5}, v8')
        a(f'v_add_u32 v12, s35, v{V16}')
        pre = OPT.get('tlb') is not None
        if not pre:
            a(f'v_lshrrev_b32 v4, 3, v{L}'); a(f'v_xor_b32 v7, v4, v{L}'); a('v_and_b32 v7, 7, v7'); a('v_lshlrev_b32 v7, 4, v7'); a('v_lshl_add_u32 v7, v4, 11, v7')
            a('s_add_u32 s35, s34, 16384')
        va, sa, sb = ('v13', 's48', 's49') if pre else ('v7', 's34', 's35')
        for nb in range(4):
            r = ACC + nb*4
            a(f's_waitcnt lgkmcnt({3 if nb else 3})' if False else f's_waitcnt lgkmcnt(3)')
            a(f'v_pk_add_f32 {vr(r,2)}, {vr(r,2)}, {vr(X+nb*4,2)}'); a(f'v_pk_add_f32 {vr(r+2,2)}, {vr(r+2,2)}, {vr(X+nb*4+2,2)}')
            a(f'v_cvt_pk_bf16_f32 v{PK+2*nb}, v{r}, v{r+1}'); a(f'v_cvt_pk_bf16_f32 v{PK+2*nb+1}, v{r+2}, v{r+3}')
            a(f'ds_write_b64 v{8+nb}, {vr(PK+2*nb,2)}')
        a('s_waitcnt lgkmcnt(0)')
        a(f'ds_read_b128 {vr(X)}, v12'); a(f'ds_read_b128 {vr(X+4)}, v12 offset:1024')
        a('s_waitcnt lgkmcnt(1)')
        a(f'buffer_store_dwordx4 {vr(X)}, {va}, s[16:19], {sa} offen' + OPT.get('outfl', ''))
        a('s_waitcnt lgkmcnt(0)')
        a(f'buffer_store_dwordx4 {vr(X+4)}, {va}, s[16:19], {sb} offen' + OPT.get('outfl', ''))
    else:
        a(f'v_and_b32 v7, 15, v{L}'); a('v_lshlrev_b32 v7, 11, v7'); a(f'v_lshrrev_b32 v4, 4, v{L}'); a('v_lshl_add_u32 v7, v4, 3, v7')
        for nb in range(4):
            r = ACC + nb*4
            a(f's_waitcnt lgkmcnt({3-nb})')
            a(f'v_pk_add_f32 {vr(r,2)}, {vr(r,2)}, {vr(X+nb*4,2)}'); a(f'v_pk_add_f32 {vr(r+2,2)}, {vr(r+2,2)}, {vr(X+nb*4+2,2)}')
            a(f'v_cvt_pk_bf16_f32 v{PK+2*nb}, v{r}, v{r+1}'); a(f'v_cvt_pk_bf16_f32 v{PK+2*nb+1}, v{r+2}, v{r+3}')
            a(f'buffer_store_dwordx2 {vr(PK+2*nb,2)}, v7, s[16:19], s34 offen offset:{nb*32}' + OPT.get('outfl', ''))
    stp(5)
    if not OPT.get('noendwait') or common.STAMP: a('s_waitcnt vmcnt(0)')
    if common.STAMP:
        stamp_flush(a, 8, 0, 12, 20, 216, aux=AUX)
    a('s_endpgm')
    if OPT.get('afirst'): farB(a)
    spin_path(a, 'K2_spinA', flag_load('s33'), FLG, 89)
    spin_path(a, 'K3_spinB', flag_load('s35'), FLG, 92, pre=['s_add_u32 s35, s33, 1024'])
    spin_path(a, 'K1_spinR', 'buffer_load_dword v239, off, s[52:55], 0 sc1', 239, 86)
    spin_path(a, 'K2_spinP1', pflag('s101'), FLG, 87)
    spin_path(a, 'K2_spinP2', pflag('s64'), FLG, 93)
    spin_path(a, 'K2_spinA1', f'buffer_load_dword v{FLG}, v{VFO2}, s[12:15], 0 offen sc1', FLG, 88)
    a('K2_fallback:')
    a('s_cmp_eq_u32 s23, 0'); a('s_cbranch_scc1 K2_fbq')
    for r in range(8): a(f'v_mov_b32 v{Q[0]+r}, v{Q[1]+r}')
    a('K2_fbq:')
    a('s_lshl_b32 s24, s22, 18'); a('s_mov_b32 s27, 64')
    a('v_mov_b32 v4, 0xff800000')
    a('K2_fbl:')
    a(f'buffer_load_dwordx4 {vr(FK)}, v{V16}, s[12:15], s24 offen{hs()}'); a(f'buffer_load_dwordx4 {vr(FK+4)}, v{V16}, s[12:15], s24 offen offset:1024{hs()}')
    a('s_waitcnt vmcnt(0)')
    for x in QK(SF, FK, Q[0], '0'): a(x)
    a('s_nop 7'); a('s_nop 3')
    rowmax(a, 4, range(SF, SF+16), 5, init=True)
    a('s_add_u32 s24, s24, 4096'); a('s_sub_u32 s27, s27, 1'); a('s_cmp_lg_u32 s27, 0'); a('s_cbranch_scc1 K2_fbl')
    a('v_mov_b32 v5, v4'); a('s_nop 1'); a('v_permlane32_swap_b32 v4, v5'); a('v_max_f32 v4, v4, v5')
    for r in range(16): a(f'v_sub_f32 v{FM+r}, 0, v4'); a(f'v_mov_b32 v{Oc+r}, 0')
    for r in range(4): a(f'v_mov_b32 v{L0+r}, 0')
    a('s_lshl_b32 s24, s22, 18'); a('s_mov_b32 s27, 64')
    a('K2_fb2:')
    a(f'buffer_load_dwordx4 {vr(FK)}, v{V16}, s[12:15], s24 offen{hs()}'); a(f'buffer_load_dwordx4 {vr(FK+4)}, v{V16}, s[12:15], s24 offen offset:1024{hs()}')
    a(f'buffer_load_dwordx4 {vr(FV)}, v{V16}, s[12:15], s24 offen offset:2048{hs()}'); a(f'buffer_load_dwordx4 {vr(FV+4)}, v{V16}, s[12:15], s24 offen offset:3072{hs()}')
    a('s_waitcnt vmcnt(0)')
    for x in QK(SF, FK, Q[0], vr(FM,16)): a(x)
    a('s_nop 7'); a('s_nop 3')
    for k in range(16): a(f'v_exp_f32 v{SF+k}, v{SF+k}')
    a('s_nop 0')
    if not OPT.get('raw'):
        for k in range(8): a(f'v_cvt_pk_bf16_f32 v{P+k}, v{SF+2*k}, v{SF+2*k+1}')
    a('s_nop 1')
    for s in range(2):
        if OPT.get('raw'): a(pvraw(Oc, FV+4*s, SF+8*s)); a(rowsum(L0, SF+8*s)); continue
        a(f'v_mfma_f32_32x32x16_bf16 {vr(Oc,16)}, {vr(FV+4*s)}, {vr(P+4*s)}, {vr(Oc,16)}')
        if not OPT.get('smf'): a(f'v_mfma_f32_16x16x32_bf16 {vr(L0)}, {vr(ONES)}, {vr(P+4*s)}, {vr(L0)}')
    if OPT.get('smf') and not OPT.get('raw'): a(rowsum(L0, P))
    a('s_add_u32 s24, s24, 4096'); a('s_sub_u32 s27, s27, 1'); a('s_cmp_lg_u32 s27, 0'); a('s_cbranch_scc1 K2_fb2')
    a('s_nop 7'); a('s_nop 7')
    if OPT.get('smf') and not OPT.get('raw'): a(f'v_add_f32 v{L0}, v{L0}, v{L0+1}'); a('s_nop 0')
    a('s_branch K2_fin')
    a('K2_end:')
    a('s_endpgm')
```

```python
M3 = {2: 4, 3: 5, 4: 6, 5: 7}
B = {'pfw': 3, 'pfslot': 10, 'fb_l': 9, 'fb_c': 12, 'pf2': 1, 'hax': 4, 'st_map': M3, 'early3': 1}
D = dict(B, deep=1, wox=1, showplan=0)
U = dict(D, post_be=['W8', 'W9'], o_u7=10, outT=1, outfl=' nt', noendwait=1)
H = dict(U, ef=2, p1_u=1, gk1=2)
A = dict(H, pb=1)
D6 = dict(A, cpf=1, cpfn=9, cpfs=128, padP=960-64)
K = dict(A, ka4=1, cpf=3)
M3o = dict(K, pal=0, alK=12)
SM = {15: 4, 16: 5, 2: 6, 4: 7}
Q5 = ([1,2,5,3,4,6,0,7], [0,3,4,2,5,7,1,6])
Q1 = ([1,0,5,2,3,6,4,7], [0,1,4,3,2,7,5,6])
Q3 = ([1,5,0,2,3,6,4,7], [0,4,1,3,2,7,5,6])
K1 = dict(M3o, kq=1)
import sys
from build import build
def make(V, stamps=False, sm=None):
    names = sys.argv[1:] or list(V)
    for n in names:
        o = V[n]
        if stamps: build(['km'], f'vs_{n}.s', stamps=True, opt=dict(o, st_map=sm or SM))
        build(['km'], f'v_{n}.s', stamps=False, opt=o)
X7 = [(0, 16), (1, 2), (1, 8), (1, 14)]
Y2 = dict(K1, qmap=Q1, xslots=X7)
G1P = [('w0', 0), ('w1', 0), ('x0', 0), ('w2', 0)]
G1 = dict(Y2, ppf=G1P)
R2 = dict(Y2, smf=1, raw=2)
RA6 = dict(R2, alB=6)
```
